```python
import torch

def _softmax(x, axis=-1):
    return torch.softmax(x, dim=axis)

def _gelu(x):
    return torch.nn.functional.gelu(x, approximate='tanh')

def _silu(x):
    return torch.nn.functional.silu(x)

def _sigmoid(x):
    return torch.sigmoid(x)

def _layernorm(x, axis=-1, eps=1e-05):
    m = x.mean(dim=axis, keepdim=True)
    v = x.var(dim=axis, keepdim=True, unbiased=False)
    return (x - m) / torch.sqrt(v + eps)

def _scatter_add(tgt, idx, src, axis=0):
    return tgt.clone().index_add_(axis, idx, src)

def _segment_sum(src, seg, n):
    out = torch.zeros((n,) + src.shape[1:], dtype=src.dtype)
    return out.index_add_(0, seg, src)

def _pad(x, pw):
    flat = tuple((v for pair in reversed(pw) for v in pair))
    return torch.nn.functional.pad(x, flat)
kernel_name = 'adaLN_cond__ssm_conv_s4__mixer_s_mlp__prompt'

def setup_inputs():

    _w = lambda a: (lambda t: t.to(torch.bfloat16) if t.is_floating_point() else t)(torch.as_tensor(a))

    def _A_setup():
        B, L, D, N = (1, 2048, 448, 256)
        A_re = -(lambda _x: torch.exp(torch.as_tensor(_x)))((lambda *s: torch.randn(*s, dtype=torch.bfloat16) * 3.2)(D, N))
        A_im = torch.pi * (lambda *s: torch.randn(*s, dtype=torch.bfloat16) * 0.1)(D, N)
        B_re = (lambda *s: torch.randn(*s, dtype=torch.bfloat16) * 0.2)(D, N)
        B_im = (lambda *s: torch.randn(*s, dtype=torch.bfloat16) * 0.2)(D, N)
        C_re = (lambda *s: torch.randn(*s, dtype=torch.bfloat16) * 0.2)(D, N)
        C_im = (lambda *s: torch.randn(*s, dtype=torch.bfloat16) * 0.2)(D, N)
        log_dt = (lambda *s: torch.randn(*s, dtype=torch.bfloat16) * 0.1)(D) * 0.5 - 4.0
        Dskip = (lambda *s: torch.randn(*s, dtype=torch.bfloat16) * 0.1)(D)
        return {'u': _w((lambda *s: torch.randn(*s, dtype=torch.bfloat16) * 0.05)(B, L, D)), 'A_re': _w(A_re), 'A_im': _w(A_im), 'B_re': _w(B_re), 'B_im': _w(B_im), 'C_re': _w(C_re), 'C_im': _w(C_im), 'log_dt': _w(log_dt), 'Dskip': _w(Dskip)}
    _A_in = _A_setup()

    def _B_setup():
        B, S, D, F = (1, 2048, 448, 1792)
        return {'x': _w((lambda *s: torch.randn(*s, dtype=torch.bfloat16) * 0.05)(B, S, D)), 'w1': _w((lambda *s: torch.randn(*s, dtype=torch.bfloat16) * 3.2)(D, D) * D ** (-0.5)), 'w2': _w((lambda *s: torch.randn(*s, dtype=torch.bfloat16) * 3.2)(D, D) * D ** (-0.5)), 'w3': _w((lambda *s: torch.randn(*s, dtype=torch.bfloat16) * 3.2)(D, F) * D ** (-0.5)), 'w4': _w((lambda *s: torch.randn(*s, dtype=torch.bfloat16) * 3.2)(F, D) * F ** (-0.5))}
    _B_in = _B_setup()
    return {'A_u': _A_in['u'], 'A_A_re': _A_in['A_re'], 'A_A_im': _A_in['A_im'], 'A_B_re': _A_in['B_re'], 'A_B_im': _A_in['B_im'], 'A_C_re': _A_in['C_re'], 'A_C_im': _A_in['C_im'], 'A_log_dt': _A_in['log_dt'], 'A_Dskip': _A_in['Dskip'], 'B_x': _B_in['x'], 'B_w1': _B_in['w1'], 'B_w2': _B_in['w2'], 'B_w3': _B_in['w3'], 'B_w4': _B_in['w4'], 'c': _w((lambda *s: torch.randn(*s, dtype=torch.bfloat16) * 0.1)(1, 448) * 8.0), 'w_mod': _w((lambda *s: torch.randn(*s, dtype=torch.bfloat16) * 0.1)(448, 6 * 448) * 448 ** (-0.5) * 8.0)}

def reference(A_u, A_A_re, A_A_im, A_B_re, A_B_im, A_C_re, A_C_im, A_log_dt, A_Dskip, B_x, B_w1, B_w2, B_w3, B_w4, c, w_mod):

    def _A_ref(u, A_re, A_im, B_re, B_im, C_re, C_im, log_dt, Dskip):
        Bsz, L, D = u.shape
        dt = torch.exp(log_dt)[:, None]
        A = A_re + 1j * A_im
        Bc = B_re + 1j * B_im
        Cc = C_re + 1j * C_im
        logdA = dt * A
        dB = dt * Bc
        l = (lambda x, dt: x.to(dt))(torch.arange(L), A_re.dtype)
        P = torch.exp(logdA[:, :, None] * l[None, None, :])
        K = torch.einsum('dn,dnl,dn->dl', Cc, P, dB).real
        L2 = 2 * L
        Kp = _pad(K, ((0, 0), (0, L)))
        up = (lambda x, *d: x.permute(*d))(u, 0, 2, 1)
        up = _pad(up, ((0, 0), (0, 0), (0, L)))
        Kf = (lambda x, axes=(-2, -1): torch.fft.rfft2(x.float(), dim=axes))(Kp[:, None, :], axes=(-2, -1))
        Uf = (lambda x, axes=(-2, -1): torch.fft.rfft2(x.float(), dim=axes))(up[:, :, None, :], axes=(-2, -1))
        Yf = Uf * Kf[None, :, :, :]
        y = (lambda x, s, axes=(-2, -1): torch.fft.irfft2(x, s=s, dim=axes).to(torch.bfloat16))(Yf, (1, L2), axes=(-2, -1))[:, :, 0, :L]
        y = (lambda x, *d: x.permute(*d))(y, 0, 2, 1) + u * Dskip[None, None, :]
        return y

    def _B_ref(x, w1, w2, w3, w4):
        B, S, D = x.shape
        h = _gelu(_layernorm(x, axis=-1) @ w1)
        c = D // 4
        g0 = _pad(h[:, :, 0 * c:1 * c], ((0, 0), (1, 0), (0, 0)))[:, :S, :]
        g1 = _pad(h[:, :, 1 * c:2 * c], ((0, 0), (0, 1), (0, 0)))[:, 1:, :]
        g2 = _pad(h[:, :, 2 * c:3 * c], ((0, 0), (2, 0), (0, 0)))[:, :S, :]
        g3 = _pad(h[:, :, 3 * c:], ((0, 0), (0, 2), (0, 0)))[:, 2:, :]
        hs = torch.concatenate([g0, g1, g2, g3], axis=-1) @ w2
        x1 = x + hs
        h2 = _gelu(_layernorm(x1, axis=-1) @ w3) @ w4
        return x1 + h2
    x = A_u
    mod = (_silu(c) @ w_mod).reshape(c.shape[0], 6, 1, -1)
    sa, ca, ga, sb, cb, gb = (mod[:, 0].clone(), mod[:, 1].clone(), mod[:, 2].clone(), mod[:, 3].clone(), mod[:, 4].clone(), mod[:, 5].clone())
    h = _layernorm(x, axis=-1) * (1 + ca) + sa
    x = x + ga * _A_ref(h, A_A_re, A_A_im, A_B_re, A_B_im, A_C_re, A_C_im, A_log_dt, A_Dskip)
    h = _layernorm(x, axis=-1) * (1 + cb) + sb
    x = x + gb * _B_ref(h, B_w1, B_w2, B_w3, B_w4)
    return x
```

```python
import re

TRANS = ("v_exp_f32", "v_log_f32", "v_rcp_f32", "v_rsq_f32", "v_sqrt_f32", "v_sin_f32", "v_cos_f32")

def regs_of(tok):
    tok = tok.strip()
    tok = tok.lstrip('-')
    if tok.startswith('abs(') or tok.startswith('|'):
        tok = tok.replace('abs(', '').replace(')', '').replace('|', '')
    m = re.fullmatch(r'([vsa])(\d+)', tok)
    if m: return {(m.group(1), int(m.group(2)))}
    m = re.fullmatch(r'([vsa])\[(\d+):(\d+)\]', tok)
    if m: return {(m.group(1), i) for i in range(int(m.group(2)), int(m.group(3)) + 1)}
    if tok == 'vcc': return {('vcc', 0), ('vcc', 1)}
    if tok == 'vcc_lo': return {('vcc', 0)}
    if tok == 'vcc_hi': return {('vcc', 1)}
    if tok == 'm0': return {('m0', 0)}
    if tok == 'exec': return {('exec', 0), ('exec', 1)}
    return set()

class Ins:
    __slots__ = ('text', 'mn', 'dst', 'src', 'valu', 'mfma', 'trans', 'vmem', 'ds', 'salu', 'dpp', 'passes',
                 'srcC', 'srcAB', 'lds_dma', 'wide_store', 'store_data', 'perml', 'rdlane', 'states', 'label', 'branch', 'sgpr_src')
    pass

def parse(line):
    I = Ins()
    I.text = line
    s = line.split(';')[0].strip()
    I.label = s.endswith(':')
    I.dst = set(); I.src = set(); I.valu = I.mfma = I.trans = I.vmem = I.ds = I.salu = I.dpp = False
    I.passes = 0; I.srcC = set(); I.srcAB = set(); I.lds_dma = False; I.wide_store = False; I.store_data = set()
    I.perml = False; I.rdlane = False; I.states = 1; I.branch = False; I.sgpr_src = set()
    if I.label or not s or s.startswith('.'):
        I.mn = ''; I.states = 0
        return I
    parts = s.split(None, 1)
    mn = parts[0]; I.mn = mn
    rest = parts[1] if len(parts) > 1 else ''
    ops = []; cur = ''; depth = 0
    for ch in rest:
        if ch == '[': depth += 1
        if ch == ']': depth -= 1
        if ch == ',' and depth == 0:
            ops.append(cur.strip()); cur = ''
        else:
            cur += ch
    if cur.strip(): ops.append(cur.strip())
    mods = ''
    if ops:
        lastp = ops[-1].split(None, 1)
        ops[-1] = lastp[0]
        if len(lastp) > 1: mods = lastp[1]
    R = [regs_of(o) for o in ops]
    if mn == 's_nop':
        I.states = int(ops[0], 0) + 1
        return I
    if mn.startswith('s_cbranch') or mn == 's_branch':
        I.branch = True; I.salu = True
        return I
    if mn.startswith('v_mfma'):
        I.mfma = True
        I.dst = R[0]; I.srcAB = R[1] | R[2]; I.srcC = R[3]; I.src = I.srcAB | I.srcC
        I.passes = 8 if '32x32x16' in mn else 4
        return I
    if mn.startswith('v_'):
        I.valu = True
        base = mn.replace('_e32', '').replace('_e64', '').replace('_dpp', '').replace('_sdwa', '')
        I.trans = base in TRANS
        I.dpp = ('row_' in mods) or ('quad_perm' in mods) or ('wave_' in mods) or mn.endswith('_dpp')
        if base.startswith('v_permlane'):
            I.perml = True
            I.dst = R[0] | R[1]; I.src = R[0] | R[1]
        elif base in ('v_add_co_u32', 'v_sub_co_u32', 'v_addc_co_u32', 'v_subb_co_u32'):
            I.dst = R[0] | R[1]; I.src = set().union(*R[2:])
        elif base in ('v_readfirstlane_b32', 'v_readlane_b32'):
            I.rdlane = True
            I.dst = R[0]; I.src = set().union(*R[1:])
        else:
            I.dst = R[0]; I.src = set().union(*R[1:]) if len(R) > 1 else set()
            if base.startswith('v_fmac') or base.startswith('v_dot2c') or base.startswith('v_pk_fmac'):
                I.src |= R[0]
            if base == 'v_cndmask_b32' and len(R) == 3:
                I.src |= {('vcc', 0), ('vcc', 1)}
        return I
    if mn.startswith('buffer_') or mn.startswith('global_'):
        I.vmem = True
        allm = (mods + ' ' + ' '.join(ops)).split()
        if 'lds' in allm:
            I.lds_dma = True; I.src = set().union(*R) | {('m0', 0)}
        elif '_load' in mn:
            I.dst = R[0]; I.src = set().union(*R[1:])
        else:
            I.src = set().union(*R)
            if mn.startswith('buffer_store'):
                I.store_data = R[0]
            elif mn.startswith('global_store'):
                I.store_data = R[1]
            I.wide_store = ('x3' in mn or 'x4' in mn)
        return I
    if mn.startswith('ds_'):
        I.ds = True
        if mn.startswith('ds_read') or mn.startswith('ds_bpermute') or mn.startswith('ds_swizzle') or mn.startswith('ds_permute'):
            I.dst = R[0]; I.src = set().union(*R[1:])
        else:
            I.src = set().union(*R)
        return I
    if mn.startswith('s_'):
        I.salu = True
        if mn in ('s_waitcnt', 's_barrier', 's_endpgm', 's_setprio', 's_sleep') or mn.startswith('s_cmp'):
            I.src = set().union(*R) if R else set()
            return I
        I.dst = R[0] if R else set(); I.src = set().union(*R[1:]) if len(R) > 1 else set()
        if 'saveexec' in mn: I.dst |= {('exec', 0), ('exec', 1)}
        return I
    raise ValueError("cannot parse: " + line)

def isS(r): return r[0] in ('s', 'vcc')

def need(p, c):
    n = 0
    pv = {r for r in p.dst if r[0] in ('v', 'a')}
    ps = {r for r in p.dst if isS(r)}
    if p.valu:
        if c.mfma and (pv & c.src): n = max(n, 2)
        if c.valu and c.dpp and (pv & c.src): n = max(n, 2)
        if c.perml and (pv & c.src): n = max(n, 2)
        if c.rdlane and (pv & c.src): n = max(n, 1)
        if p.trans and c.valu and not c.trans and (pv & c.src): n = max(n, 1)
        if p.trans and (c.vmem or c.ds) and (pv & c.src): n = max(n, 1)
        if ps:
            if c.valu and (ps & c.src): n = max(n, 4 if c.rdlane else 2)
            if c.vmem and (ps & c.src): n = max(n, 5)
            if c.ds and (ps & c.src): n = max(n, 5)
            if c.salu and (ps & c.src): n = max(n, 1)
    if p.mfma:
        big = {4: 8, 8: 12}[p.passes]
        if c.mfma:
            if p.dst & c.srcAB: n = max(n, big)
            if p.dst & c.srcC:
                if not (p.dst == c.srcC and p.passes == c.passes): n = max(n, big - 2)
            if (p.dst & c.dst) and not (p.dst == c.dst and p.dst == c.srcC): n = max(n, big - 2)
        elif (c.valu or c.vmem or c.ds):
            if p.dst & (c.src | c.dst): n = max(n, big)
        if c.valu and (p.srcC & c.dst): n = max(n, {4: 3, 8: 7}[p.passes])
    if p.salu and (('m0', 0) in p.dst) and (c.lds_dma or (c.ds and 'addtid' in c.mn)): n = max(n, 1)
    if p.vmem and p.wide_store and (p.store_data & c.dst):
        n = max(n, 2 if c.valu else 1)
    return n

def max_need(p):
    if p.mfma: return {4: 8, 8: 12}[p.passes]
    if p.valu:
        return 5 if any(isS(r) for r in p.dst) else 2
    if p.vmem and p.wide_store: return 2
    if p.salu and (('m0', 0) in p.dst): return 1
    return 0

def hazard_pass(lines):
    out = []
    win = []
    def advance(k):
        for w in win: w[1] += k
        while win and win[0][1] > 24: win.pop(0)
    def add_nops(k):
        while k > 0:
            t = min(k, 16)
            out.append(f"    s_nop {t-1}")
            advance(t); k -= t
    for ln in lines:
        I = parse(ln)
        if I.states == 0:
            out.append(ln); continue
        req = 0
        if I.branch:
            for p, d in win: req = max(req, max_need(p) - d)
        else:
            for p, d in win: req = max(req, need(p, I) - d)
        if req > 0: add_nops(req)
        out.append(ln)
        advance(I.states)
        if I.mn != 's_nop':
            win.append([I, 0])
    return out

class Kern:
    def __init__(self, name):
        self.name = name; self.L = []; self.nlab = 0
        self.vmax = 0; self.smax = 0
    def __call__(self, s):
        for ln in s.strip('\n').split('\n'):
            ln = ln.strip()
            if not ln: continue
            self.L.append(ln if ln.endswith(':') else '    ' + ln)
    def label(self, base='L'):
        self.nlab += 1
        return f"{self.name}_{base}{self.nlab}"
    def finish(self, raw=False):
        lines = self.L if raw else hazard_pass(self.L)
        vm = 0; sm = 0
        for ln in lines:
            I = parse(ln)
            for r in (I.dst | I.src):
                if r[0] == 'v': vm = max(vm, r[1] + 1)
                if r[0] == 's': sm = max(sm, r[1] + 1)
        self.vmax = vm; self.smax = sm
        head = [f".globl {self.name}", ".p2align 8", f".type {self.name},@function", f"{self.name}:"]
        return "\n".join(head + lines) + "\n"
    def descriptor(self):
        v = max(self.vmax, 8); acc = (v + 3) // 4 * 4
        return f""".p2align 6
.amdhsa_kernel {self.name}
  .amdhsa_next_free_vgpr {v}
  .amdhsa_next_free_sgpr {max(self.smax, 16)}
  .amdhsa_accum_offset {acc}
  .amdhsa_group_segment_fixed_size 0
  .amdhsa_kernarg_size 152
  .amdhsa_user_sgpr_count 2
  .amdhsa_user_sgpr_kernarg_segment_ptr 1
  .amdhsa_system_sgpr_workgroup_id_x 1
.end_amdhsa_kernel
"""

def vr(a, n=1):
    return f"v{a}" if n == 1 else f"v[{a}:{a+n-1}]"
def sr(a, n=1):
    return f"s{a}" if n == 1 else f"s[{a}:{a+n-1}]"
import struct
def f2u(x):
    return "0x%08x" % struct.unpack('<I', struct.pack('<f', x))[0]
```

```python
import sys, math
from asmlib import *

MB = 1 << 20
WS_MOD = 0
WS_CS3 = 16384
WS_MOD1 = 32768
WS_ST  = 65536
WS_LNT = 1 * MB
WS_KH  = 3 * MB
WS_KL  = 5 * MB
WS_ZT  = 7 * MB
WS_X1  = 9 * MB
WS_H2  = 11 * MB
WS_G   = 13 * MB
WS_XP  = 15 * MB
WS_H3  = 17 * MB
ACT_BYTES = 2048 * 448 * 2
LOG2E = 1.4426950408889634
USE_KLO = True

P = lambda i: 16 + 2 * i
S_OUT = 48; S_WS = 52

def load_kernargs(k):
    k("""s_load_dwordx16 s[16:31], s[0:1], 0
s_load_dwordx16 s[32:47], s[0:1], 64
s_load_dwordx4 s[48:51], s[0:1], 128
s_load_dwordx2 s[52:53], s[0:1], 144""")

def srd(k, d, base, off, size):
    if off:
        k(f"s_add_u32 s{d}, s{base}, {off}\ns_addc_u32 s{d+1}, s{base+1}, 0")
    else:
        k(f"s_mov_b32 s{d}, s{base}\ns_mov_b32 s{d+1}, s{base+1}")
    k(f"s_mov_b32 s{d+2}, {size}\ns_mov_b32 s{d+3}, 0x00020000")

def dpp_sum16(k, v, t):
    k(f"""v_add_f32_dpp v{t}, v{v}, v{v} row_ror:8 row_mask:0xf bank_mask:0xf
v_add_f32_dpp v{v}, v{t}, v{t} row_ror:4 row_mask:0xf bank_mask:0xf
v_add_f32_dpp v{t}, v{v}, v{v} row_ror:2 row_mask:0xf bank_mask:0xf
v_add_f32_dpp v{v}, v{t}, v{t} row_ror:1 row_mask:0xf bank_mask:0xf""")

def rnd1(k, v):
    k(f"v_cvt_pk_bf16_f32 v{v}, v{v}, v{v}\nv_and_b32 v{v}, 0xffff0000, v{v}")

def unpack(k, p, a, b):
    k(f"v_lshlrev_b32 v{a}, 16, v{p}\nv_and_b32 v{b}, 0xffff0000, v{p}")

def ln_stats(k, X, T):
    a = T[0:4]; t = T[4]; mean = T[5]; mb = T[6]; rinv = T[7]
    n = len(X)
    for c in range(4):
        k(f"v_add_f32 v{a[c]}, v{X[c]}, v{X[c+4]}")
    for i in range(8, n):
        k(f"v_add_f32 v{a[i%4]}, v{a[i%4]}, v{X[i]}")
    k(f"v_add_f32 v{a[0]}, v{a[0]}, v{a[1]}\nv_add_f32 v{a[2]}, v{a[2]}, v{a[3]}\nv_add_f32 v{mean}, v{a[0]}, v{a[2]}")
    dpp_sum16(k, mean, t)
    k(f"v_mul_f32 v{mean}, {f2u(1.0/448)}, v{mean}")
    for i in range(n):
        c = i % 4
        k(f"v_sub_f32 v{t}, v{X[i]}, v{mean}")
        if i < 4: k(f"v_mul_f32 v{a[c]}, v{t}, v{t}")
        else: k(f"v_fmac_f32 v{a[c]}, v{t}, v{t}")
    k(f"v_add_f32 v{a[0]}, v{a[0]}, v{a[1]}\nv_add_f32 v{a[2]}, v{a[2]}, v{a[3]}\nv_add_f32 v{rinv}, v{a[0]}, v{a[2]}")
    dpp_sum16(k, rinv, t)
    k(f"v_mul_f32 v{rinv}, {f2u(1.0/448)}, v{rinv}")
    rnd1(k, rinv)
    k(f"v_add_f32 v{rinv}, {f2u(1e-5)}, v{rinv}")
    rnd1(k, rinv)
    k(f"v_sqrt_f32 v{rinv}, v{rinv}")
    rnd1(k, rinv)
    k(f"v_rcp_f32 v{rinv}, v{rinv}")
    k(f"v_cvt_pk_bf16_f32 v{mb}, v{mean}, v{mean}\nv_and_b32 v{mb}, 0xffff0000, v{mb}")
    return mb, rinv

def ln_apply(k, X, mb, rinv, outP, keep=None):
    for i in range(0, len(X), 2):
        a, b = X[i], X[i+1]; p = outP[i//2]
        k(f"""v_sub_f32 v{a}, v{a}, v{mb}
v_sub_f32 v{b}, v{b}, v{mb}
v_cvt_pk_bf16_f32 v{p}, v{a}, v{b}""")
        unpack(k, p, a, b)
        k(f"""v_mul_f32 v{a}, v{a}, v{rinv}
v_mul_f32 v{b}, v{b}, v{rinv}
v_cvt_pk_bf16_f32 v{p}, v{a}, v{b}""")
        if keep: unpack(k, p, a, b)

K1_LN = 64; K1_MOD = 42; K1_CS = 28; K1_KG = 448
K1_WGS = K1_LN + K1_MOD + K1_CS + K1_KG
K1_LDS = 38912

def cmul(k, dr, di, ar, ai, br, bi):
    k(f"""v_mul_f32 v{dr}, v{ar}, v{br}
v_mul_f32 v{di}, v{ar}, v{bi}
v_fma_f32 v{dr}, -v{ai}, v{bi}, v{dr}
v_fmac_f32 v{di}, v{ai}, v{br}""")

def gen_k1():
    k = Kern("k1_kernel")
    Lend = "k1_end"; Lgemv = "k1_gemv"; Lkg = "k1_kgen"
    k(f"s_cmp_ge_u32 s2, {K1_WGS}\ns_cbranch_scc1 {Lend}")
    load_kernargs(k)
    k(f"""v_and_b32 v1, 63, v0
v_lshrrev_b32 v2, 6, v0
v_and_b32 v3, 15, v0
v_bfe_u32 v4, v0, 4, 2""")
    k(f"s_cmp_ge_u32 s2, {K1_LN + K1_MOD + K1_CS}\ns_cbranch_scc1 {Lkg}")
    k(f"s_cmp_ge_u32 s2, {K1_LN}\ns_cbranch_scc1 {Lgemv}")
    S = 904
    k("s_waitcnt lgkmcnt(0)")
    srd(k, 56, P(0), 0, ACT_BYTES)
    srd(k, 60, S_WS, WS_LNT, ACT_BYTES)
    k(f"""s_mul_i32 s4, s2, {32*896}
v_lshl_add_u32 v5, v2, 3, v4
v_mul_u32_u24 v6, 896, v5
v_lshl_add_u32 v6, v3, 3, v6
v_add_u32 v7, 3584, v6""")
    RAW = [list(range(10, 24)), list(range(24, 38))]
    for p in range(2):
        for i in range(7):
            k(f"buffer_load_dwordx2 v[{RAW[p][2*i]}:{RAW[p][2*i+1]}], v{6+p}, s[56:59], s4 offen offset:{128*i}")
    k(f"""v_mul_u32_u24 v8, {S}, v5
v_lshl_add_u32 v8, v3, 3, v8""")
    X = list(range(40, 68)); T = list(range(68, 76))
    for p in range(2):
        k(f"s_waitcnt vmcnt({7 if p == 0 else 0})")
        for i in range(14):
            unpack(k, RAW[p][i], X[2*i], X[2*i+1])
        mb, rinv = ln_stats(k, X, T)
        ln_apply(k, X, mb, rinv, RAW[p])
        for i in range(7):
            k(f"ds_write_b64 v8, v[{RAW[p][2*i]}:{RAW[p][2*i+1]}] offset:{128*i + p*4*S}")
    k(f"""v_lshrrev_b32 v9, 2, v3
v_lshl_add_u32 v9, v4, 3, v9
v_mul_u32_u24 v9, {S}, v9
v_and_b32 v5, 3, v3
v_lshl_add_u32 v9, v5, 3, v9
v_lshl_add_u32 v9, v2, 5, v9
v_lshl_add_u32 v5, v2, 4, v3
v_lshlrev_b32 v5, 12, v5
v_lshl_add_u32 v5, v4, 4, v5
s_lshl_b32 s5, s2, 6
s_waitcnt lgkmcnt(0)
s_barrier""")
    for j in range(7):
        b = 10 + 4*j
        k(f"ds_read_b64_tr_b16 v[{b}:{b+1}], v9 offset:{128*j}")
        k(f"ds_read_b64_tr_b16 v[{b+2}:{b+3}], v9 offset:{128*j + 4*S}")
    for j in range(7):
        b = 10 + 4*j
        k(f"s_waitcnt lgkmcnt({12 - 2*j})")
        k(f"buffer_store_dwordx4 v[{b}:{b+3}], v5, s[60:63], s5 offen")
        if j < 6: k(f"s_add_u32 s5, s5, {64*4096}")
    k("s_endpgm")
    k(f"{Lgemv}:")
    k("s_waitcnt lgkmcnt(0)")
    Lcs = k.label("cs"); Lj = k.label("j")
    k(f"s_cmp_ge_u32 s2, {K1_LN + K1_MOD}\ns_cbranch_scc1 {Lcs}")
    srd(k, 56, P(15), 0, 448*5376)
    srd(k, 60, S_WS, WS_MOD, WS_MOD1 + 2688*4)
    srd(k, 64, P(14), 0, 896)
    k(f"""s_sub_u32 s4, s2, {K1_LN}
s_mov_b32 s6, 5376
v_lshlrev_b32 v5, 1, v0
buffer_load_ushort v6, v5, s[64:67], 0 offen
buffer_load_ushort v7, v5, s[64:67], 0 offen offset:512
s_waitcnt vmcnt(0)""")
    for v in (6, 7):
        k(f"""v_lshlrev_b32 v{v}, 16, v{v}
v_mul_f32 v8, {f2u(-LOG2E)}, v{v}
v_exp_f32 v8, v8
v_add_f32 v8, 1.0, v8
v_rcp_f32 v8, v8
v_mul_f32 v{v}, v{v}, v8""")
        rnd1(k, v)
    k(f"s_mov_b32 s7, 1\ns_branch {Lj}")
    k(f"{Lcs}:")
    srd(k, 56, P(12), 0, 448*3584)
    srd(k, 60, S_WS, WS_CS3, 1792*4)
    k(f"""s_sub_u32 s4, s2, {K1_LN + K1_MOD}
s_mov_b32 s6, 3584
v_mov_b32 v6, 1.0
v_mov_b32 v7, 1.0
s_mov_b32 s7, 0""")
    k(f"{Lj}:")
    k(f"""v_lshlrev_b32 v5, 2, v0
ds_write_b32 v5, v6
ds_write_b32 v5, v7 offset:1024
v_lshl_add_u32 v8, v2, 2, v4
v_mul_lo_u32 v9, v8, s6
v_lshl_add_u32 v9, v3, 3, v9
s_lshl_b32 s5, s4, 7
s_lshl_b32 s8, s6, 4""")
    for i in range(28):
        k(f"buffer_load_dwordx2 v[{10+2*i}:{11+2*i}], v9, s[56:59], s5 offen")
        if i < 27: k("s_add_u32 s5, s5, s8")
    k(f"""v_lshlrev_b32 v5, 2, v8
s_waitcnt lgkmcnt(0)
s_barrier""")
    for i in range(28):
        k(f"ds_read_b32 v{66+i}, v5 offset:{64*i}")
    k("v_mov_b32 v96, 0\nv_mov_b32 v97, 0\nv_mov_b32 v98, 0\nv_mov_b32 v99, 0\ns_waitcnt lgkmcnt(0)")
    for i in range(28):
        k(f"s_waitcnt vmcnt({27-i})")
        unpack(k, 10+2*i, 100, 101); unpack(k, 11+2*i, 102, 103)
        for c in range(4):
            k(f"v_fmac_f32 v{96+c}, v{100+c}, v{66+i}")
    k(f"""v_lshlrev_b32 v5, 8, v8
v_lshl_add_u32 v5, v3, 4, v5
ds_write_b128 v5, v[96:99] offset:2048
v_lshlrev_b32 v5, 2, v0
s_waitcnt lgkmcnt(0)
s_barrier
v_cmp_gt_u32 vcc, 64, v0
s_and_saveexec_b64 s[10:11], vcc
s_cbranch_execz {Lend}""")
    for i in range(16):
        k(f"ds_read_b32 v{10+i}, v5 offset:{2048 + 256*i}")
    k("s_waitcnt lgkmcnt(0)")
    for st in (8, 4, 2, 1):
        for i in range(st):
            k(f"v_add_f32 v{10+i}, v{10+i}, v{10+i+st}")
    Lnr = k.label("nr")
    k(f"s_cmp_eq_u32 s7, 0\ns_cbranch_scc1 {Lnr}")
    rnd1(k, 10)
    k("v_add_f32 v11, 1.0, v10")
    rnd1(k, 11)
    k(f"""s_lshl_b32 s5, s4, 8
s_add_u32 s5, s5, {WS_MOD1 - WS_MOD}
buffer_store_dword v11, v5, s[60:63], s5 offen""")
    k(f"{Lnr}:")
    k(f"""s_lshl_b32 s5, s4, 8
buffer_store_dword v10, v5, s[60:63], s5 offen
s_endpgm""")
    k(f"{Lkg}:")
    WREG = 8704
    FT = 4 * WREG
    k(f"""s_sub_u32 s4, s2, {K1_LN + K1_MOD + K1_CS}
s_lshl_b32 s5, s4, 9
v_lshl_add_u32 v5, v0, 1, s5
s_and_b32 s6, s4, 0xfffffffe
s_lshl_b32 s6, s6, 1
s_waitcnt lgkmcnt(0)""")
    for i in range(6):
        k(f"global_load_ushort v{10+i}, v5, s[{P(1+i)}:{P(1+i)+1}]")
    k(f"""s_add_u32 s8, s{P(7)}, s6
s_addc_u32 s9, s{P(7)+1}, 0
s_load_dword s10, s[8:9], 0""")
    k(f"""v_mul_u32_u24 v6, {WREG}, v2
v_lshl_add_u32 v7, v1, 2, v6""")
    WB = list(range(100, 108))
    for i in range(8):
        k(f"v_add_u32 v{WB[i]}, {i*1088}, v7")
    k(f"""v_mul_u32_u24 v8, 544, v3
v_add_u32 v8, v8, v6
v_lshl_add_u32 v8, v4, 4, v8""")
    k(f"""s_waitcnt lgkmcnt(0)
s_and_b32 s11, s4, 1
s_lshl_b32 s11, s11, 4
s_lshr_b32 s10, s10, s11
s_lshl_b32 s10, s10, 16
v_mov_b32 v9, s10
v_mul_f32 v9, {f2u(LOG2E)}, v9
v_exp_f32 v9, v9""")
    rnd1(k, 9)
    k("s_waitcnt vmcnt(0)")
    for i in range(6):
        k(f"v_lshlrev_b32 v{10+i}, 16, v{10+i}")
    k("""v_mul_f32 v10, v9, v10
v_mul_f32 v11, v9, v11
v_mul_f32 v12, v9, v12
v_mul_f32 v13, v9, v13""")
    W0 = (16, 17)
    cmul(k, 16, 17, 14, 15, 12, 13)
    def cexp(dr, di, m, t0, t1):
        k(f"""v_mul_f32 v{t0}, {f2u(m*LOG2E)}, v10
v_mul_f32 v{t1}, {f2u(m/(2*math.pi))}, v11
v_exp_f32 v{t0}, v{t0}
v_fract_f32 v{t1}, v{t1}
v_cos_f32 v{dr}, v{t1}
v_sin_f32 v{di}, v{t1}
v_mul_f32 v{dr}, v{dr}, v{t0}
v_mul_f32 v{di}, v{di}, v{t0}""")
    U = {u: (18 + 2*u, 19 + 2*u) for u in range(1, 8)}
    E8 = (34, 35); E16 = (36, 37); E128 = (38, 39); E256 = (40, 41)
    cexp(U[1][0], U[1][1], 1.0, 42, 43)
    cexp(E8[0], E8[1], 8.0, 44, 45)
    cexp(E128[0], E128[1], 128.0, 46, 47)
    cnt = [0]
    def emit_val(p, vr_, vi_, neg, t):
        h, a, b, lo = t
        ng = '-' if neg else ''
        k(f"""v_cvt_pk_bf16_f32 v{h}, v{vr_}, {ng}v{vi_}
v_lshlrev_b32 v{a}, 16, v{h}
v_and_b32 v{b}, 0xffff0000, v{h}
v_sub_f32 v{a}, v{vr_}, v{a}
v_sub_f32 v{b}, {ng}v{vi_}, v{b}
v_cvt_pk_bf16_f32 v{lo}, v{a}, v{b}""")
        o = (p % 2) * 136
        k(f"ds_write2_b32 v{WB[p//2]}, v{h}, v{lo} offset0:{o} offset1:{o+68}")
    TS = [(48, 49, 50, 51), (52, 53, 54, 55)]
    def nextT():
        cnt[0] += 1
        return TS[cnt[0] % 2]
    cmul(k, E16[0], E16[1], E8[0], E8[1], E8[0], E8[1])
    k("v_mov_b32 v48, 0x3f80\nv_mov_b32 v49, 0")
    k(f"ds_write2_b32 v{WB[0]}, v48, v49 offset0:0 offset1:68")
    emit_val(1, E8[0], E8[1], True, nextT())
    emit_val(2, E16[0], E16[1], True, nextT())
    ev = E16; od = E8
    bufs = [(56, 57), (58, 59), (60, 61), (62, 63)]
    bi = 0
    for j in range(3, 16):
        src = od if j % 2 else ev
        d = bufs[bi % 4]; bi += 1
        cmul(k, d[0], d[1], src[0], src[1], E16[0], E16[1])
        emit_val(j, d[0], d[1], True, nextT())
        if j % 2: od = d
        else: ev = d
    for (u, a, b) in ((2, 1, 1), (3, 2, 1), (4, 2, 2), (5, 4, 1), (6, 4, 2), (7, 4, 3)):
        cmul(k, U[u][0], U[u][1], U[a][0], U[a][1], U[b][0], U[b][1])
    cmul(k, E256[0], E256[1], E128[0], E128[1], E128[0], E128[1])
    RF = 64
    k("s_waitcnt lgkmcnt(0)")
    for lo in range(2):
        for s in range(4):
            b = RF + 16*lo + 4*s
            k(f"ds_read_b128 v[{b}:{b+3}], v8 offset:{64*s + 272*lo}")
    LF = 108
    ACC = 140
    for i in range(12): k(f"v_mov_b32 v{ACC+i}, 0")
    Wreg = {0: W0}
    wb = [(152, 153), (154, 155), (156, 157), (158, 159)]
    wi = [0]
    def getW(v):
        if v in Wreg: return Wreg[v]
        d = wb[wi[0] % 4]; wi[0] += 1
        if v == 1:
            cmul(k, d[0], d[1], W0[0], W0[1], E128[0], E128[1])
        else:
            s = getW(v-2)
            cmul(k, d[0], d[1], s[0], s[1], E256[0], E256[1])
        Wreg[v] = d
        return d
    tiles = [
        [(v, u) for v in (0, 1) for u in range(8)],
        [(v, u) for v in (2, 3) for u in (0, 2, 4, 6)] + [(v, u) for v in (4, 5, 6, 7) for u in (0, 4)],
        [(v, 0) for v in range(8, 17)],
    ]
    for ti, rows in enumerate(tiles):
        if ti == 0:
            k("s_waitcnt lgkmcnt(0)")
        for p, (v, u) in enumerate(rows):
            w = getW(v)
            if u == 0:
                emit_val(p, w[0], w[1], False, nextT())
            else:
                d = bufs[bi % 4]; bi += 1
                cmul(k, d[0], d[1], w[0], w[1], U[u][0], U[u][1])
                emit_val(p, d[0], d[1], False, nextT())
        k("s_waitcnt lgkmcnt(0)")
        for lo in range(2):
            for s in range(4):
                b = LF + 16*lo + 4*s
                k(f"ds_read_b128 v[{b}:{b+3}], v8 offset:{64*s + 272*lo}")
        a = ACC + 4*ti
        seq = [(0, s, 0, s) for s in range(4)] + [(0, s, 1, s) for s in range(4)] + [(1, s, 0, s) for s in range(4)]
        for n, (ll, s, rl, s2) in enumerate(seq):
            if n < 4: k(f"s_waitcnt lgkmcnt({7-n})")
            if n == 8: k("s_waitcnt lgkmcnt(0)")
            lb = LF + 16*ll + 4*s; rb = RF + 16*rl + 4*s2
            k(f"v_mfma_f32_16x16x32_bf16 v[{a}:{a+3}], v[{lb}:{lb+3}], v[{rb}:{rb+3}], v[{a}:{a+3}]")
    k(f"""v_and_b32 v10, 1, v4
v_lshrrev_b32 v11, 1, v4
v_lshlrev_b32 v12, 4, v10
v_lshl_add_u32 v12, v11, 9, v12
v_lshl_add_u32 v12, v3, 5, v12
v_add_u32 v12, v12, v6""")
    k(f"""v_lshlrev_b32 v13, 8, v10
v_lshl_add_u32 v14, v3, 4, v13
v_add_u32 v14, 1024, v14
v_lshl_add_u32 v15, v3, 3, v13
v_add_u32 v15, 1536, v15
v_cmp_gt_u32 vcc, 2, v4
v_cndmask_b32 v14, v15, v14, vcc
v_mov_b32 v15, 128
v_cndmask_b32 v15, v15, 8, vcc
v_add_u32 v14, v14, v6
v_add_u32 v15, v15, v14
v_lshlrev_b32 v16, 8, v4
v_lshl_add_u32 v16, v3, 2, v16
v_add_u32 v16, v16, v6""")
    k(f"""ds_write_b128 v12, v[{ACC}:{ACC+3}]
ds_write_b64 v14, v[{ACC+4}:{ACC+5}]
ds_write_b64 v15, v[{ACC+6}:{ACC+7}]""")
    for r in range(4):
        k(f"ds_write_b32 v16, v{ACC+8+r} offset:{2048 + 64*r}")
    k(f"""v_lshlrev_b32 v17, 2, v0
s_waitcnt lgkmcnt(0)
s_barrier""")
    for t in range(3):
        for w in range(4):
            k(f"ds_read_b32 v{20+4*t+w}, v17 offset:{w*WREG + 1024*t}")
    k("s_waitcnt lgkmcnt(0)")
    for t in range(3):
        b = 20 + 4*t
        k(f"v_add_f32 v{b}, v{b}, v{b+1}\nv_add_f32 v{b+2}, v{b+2}, v{b+3}\nv_add_f32 v{b}, v{b}, v{b+2}")
        k(f"ds_write_b32 v17, v{b} offset:{FT + 1024*t}")
    k(f"""v_lshlrev_b32 v18, 3, v0
v_cvt_f32_u32 v19, v18
s_mov_b32 s12, {(FT - 0x10A00) & 0xffffffff}
v_cmp_gt_u32 vcc, 16, v0
v_lshlrev_b32 v18, 5, v0""")
    for e in range(1, 8):
        k(f"v_add_f32 v{40+e}, {float(e)}, v19" if e in (1, 2, 4) else f"v_add_f32 v{40+e}, {f2u(float(e))}, v19")
    k("v_mov_b32 v40, v19")
    for pz in range(4):
        k(f"v_cvt_pk_bf16_f32 v{50+pz}, v{40+2*pz}, v{41+2*pz}")
    for pz in range(4):
        k(f"""v_and_b32 v{40+2*pz}, 0xffff, v{50+pz}
v_lshrrev_b32 v{41+2*pz}, 16, v{50+pz}""")
    for e in range(8):
        k(f"""v_lshl_add_u32 v{40+e}, v{40+e}, 2, s12
v_add_u32 v54, {FT + 4*e}, v18
v_cndmask_b32 v{40+e}, v{40+e}, v54, vcc""")
    k("s_waitcnt lgkmcnt(0)\ns_barrier")
    for e in range(8):
        k(f"ds_read_b32 v{60+e}, v{40+e}")
    srd(k, 56, S_WS, WS_KH, ACT_BYTES)
    srd(k, 60, S_WS, WS_KL, ACT_BYTES)
    k(f"""s_lshl_b32 s5, s4, 12
v_lshlrev_b32 v18, 4, v0
s_waitcnt lgkmcnt(0)""")
    for pz in range(4):
        a, b = 67 - 2*pz, 66 - 2*pz
        k(f"v_cvt_pk_bf16_f32 v{70+pz}, v{a}, v{b}")
    k("buffer_store_dwordx4 v[70:73], v18, s[56:59], s5 offen")
    if USE_KLO:
        for pz in range(4):
            a, b = 67 - 2*pz, 66 - 2*pz
            unpack(k, 70+pz, 80, 81)
            k(f"v_sub_f32 v{a}, v{a}, v80\nv_sub_f32 v{b}, v{b}, v81\nv_cvt_pk_bf16_f32 v{74+pz}, v{a}, v{b}")
        k("buffer_store_dwordx4 v[74:77], v18, s[60:63], s5 offen")
    k(f"{Lend}:\ns_endpgm")
    return k, (K1_WGS, 256, K1_LDS)

def build(kernels, path):
    head = open("adaLN_cond__ssm_conv_s4__mixer_s_mlp__prompt.s.ref").read().split("\n")
    hdr = [l for l in head if l.startswith(";") and "@launch" not in l and not l.startswith("; Override") and not l.startswith("; grid=")]
    out = hdr[:]
    bodies = []; descs = []
    for k, (g, b, lds) in kernels:
        out.append(f"; @launch kernel={k.name} grid=({g},1,1) block=({b},1,1) lds={lds}")
    out.append('.amdgcn_target "amdgcn-amd-amdhsa--gfx950"')
    out.append(".text")
    for k, _ in kernels:
        out.append(k.finish())
    out.append('.section .rodata,"a"')
    for k, _ in kernels:
        out.append(k.descriptor())
    open(path, "w").write("\n".join(out))
    for k, _ in kernels:
        print(k.name, "vgpr", k.vmax, "sgpr", k.smax, "lines", len(k.L))

if __name__ == "__main__":
    ks = [gen_k1()]
    build(ks, sys.argv[1] if len(sys.argv) > 1 else "full.s")
```

```python
from gen import *

K2_CS = 4256
K2_KH = 8 * K2_CS
K2_KSZ = 4576
K2_RED = K2_KH + 2 * K2_KSZ
K2_LDS = K2_RED + 32768

def gen_k2():
    k = Kern("k2_kernel")
    Lend = "k2_end"
    CS = K2_CS; KH = K2_KH; KSZ = K2_KSZ; RED = K2_RED
    k(f"s_cmp_ge_u32 s2, 448\ns_cbranch_scc1 {Lend}")
    k(f"""s_load_dwordx2 s[52:53], s[0:1], 144
s_load_dwordx2 s[32:33], s[0:1], 64
v_and_b32 v1, 63, v0
v_lshrrev_b32 v2, 6, v0
v_and_b32 v3, 15, v0
v_bfe_u32 v4, v0, 4, 2
s_lshl_b32 s4, s2, 12
s_lshl_b32 s5, s2, 2
s_and_b32 s6, s2, 0xfffffffe
s_lshl_b32 s6, s6, 1
v_lshl_add_u32 v5, v0, 4, s4
v_subrev_u32 v6, 16, v5
v_readfirstlane_b32 s7, v2
s_waitcnt lgkmcnt(0)""")
    srd(k, 56, S_WS, WS_LNT, ACT_BYTES)
    srd(k, 60, S_WS, WS_KH, ACT_BYTES)
    srd(k, 64, S_WS, WS_KL, ACT_BYTES)
    srd(k, 68, S_WS, WS_ZT, ACT_BYTES)
    k(f"""buffer_load_dwordx4 v[8:11], v6, s[56:59], 0 offen
buffer_load_dwordx4 v[12:15], v5, s[56:59], 0 offen
s_lshl_b32 s8, s7, 10
s_add_u32 s8, s8, {KH + 480}
s_mov_b32 m0, s8
s_add_u32 s10, s52, s5
s_addc_u32 s11, s53, 0
buffer_load_dwordx4 v5, s[60:63], 0 offen lds""")
    if USE_KLO:
        k(f"""s_add_u32 s8, s8, {KSZ}
s_mov_b32 m0, s8
s_nop 0
buffer_load_dwordx4 v5, s[64:67], 0 offen lds""")
    k(f"""s_load_dword s12, s[10:11], {WS_MOD}
s_load_dword s13, s[10:11], {WS_MOD + 448*4}
s_load_dword s14, s[10:11], {WS_MOD + 896*4}
s_add_u32 s10, s32, s6
s_addc_u32 s11, s33, 0
s_load_dword s15, s[10:11], 0""")
    k(f"""v_and_b32 v16, 31, v1
v_min_u32 v16, 29, v16
v_lshlrev_b32 v16, 4, v16
v_lshrrev_b32 v17, 5, v1
v_mul_u32_u24 v17, {KSZ}, v17
v_add_u32 v16, v16, v17
v_add_u32 v16, {KH}, v16
v_mul_u32_u24 v17, {CS}, v1
v_cmp_gt_u32 vcc, 8, v1
v_cndmask_b32 v17, 16, v17, vcc
v_and_b32 v18, 1, v2
v_cmp_eq_u32 vcc, 1, v18
v_cndmask_b32 v16, v16, v17, vcc
v_mov_b32 v20, 0
v_mov_b32 v21, 0
v_mov_b32 v22, 0
v_mov_b32 v23, 0
ds_write_b128 v16, v[20:23]""")
    k(f"""s_waitcnt lgkmcnt(0)
s_and_b32 s6, s2, 1
s_lshl_b32 s6, s6, 4
s_lshr_b32 s15, s15, s6
s_lshl_b32 s15, s15, 16
v_mov_b32 v16, s13
v_add_f32 v16, 1.0, v16""")
    rnd1(k, 16)
    k("v_cmp_eq_u32 vcc, 0, v0\ns_waitcnt vmcnt(%d)" % (2 if USE_KLO else 1))
    for i in range(8):
        unpack(k, 8+i, 42, 43)
        k(f"""v_mul_f32 v42, v42, v16
v_mul_f32 v43, v43, v16
v_cvt_pk_bf16_f32 v44, v42, v43""")
        unpack(k, 44, 42, 43)
        k(f"""v_add_f32 v42, s12, v42
v_add_f32 v43, s12, v43
v_cvt_pk_bf16_f32 v{24+i}, v42, v43""")
        if i < 4: k(f"v_cndmask_b32 v{24+i}, v{24+i}, 0, vcc")
    for i in range(1, 7):
        k(f"v_mov_b32 v{33+i}, v{24+i}")
    for i in range(7):
        k(f"v_alignbyte_b32 v{46+i}, v{25+i}, v{24+i}, 2")
    for i in range(1, 7):
        k(f"v_alignbyte_b32 v{53+i}, v{25+i}, v{24+i}, 2")
    k(f"v_lshlrev_b32 v17, 4, v0")
    k(f"ds_write_b128 v17, v[28:31] offset:32")
    srcs = {1: 46, 2: 34, 3: 54, 4: 26, 5: 48, 6: 36, 7: 56}
    for s in range(1, 8):
        b = srcs[s]
        k(f"ds_write_b128 v17, v[{b}:{b+3}] offset:{s*CS + 16}")
    k(f"""v_add_u32 v18, 1, v3
v_and_b32 v19, 7, v18
v_mul_u32_u24 v19, {CS}, v19
v_lshrrev_b32 v18, 3, v18
v_sub_u32 v18, v18, v4
v_add_u32 v18, 3, v18
v_lshl_add_u32 v19, v18, 4, v19
v_lshl_add_u32 v19, v2, 7, v19
v_lshlrev_b32 v18, 5, v3
v_lshl_add_u32 v18, v4, 4, v18
v_lshlrev_b32 v20, 7, v2
v_sub_u32 v18, v18, v20
v_add_u32 v18, {KH + 384}, v18""")
    ACC = 64; AF = 96; BH = 128; BL = 160
    for i in range(32): k(f"v_mov_b32 v{ACC+i}, 0")
    k("s_waitcnt vmcnt(0) lgkmcnt(0)\ns_barrier")
    for rr in range(2):
        for m in range(8):
            k(f"ds_read_b128 v[{AF+4*m}:{AF+4*m+3}], v19 offset:{64*rr + 512*m}")
            k(f"ds_read_b128 v[{BH+4*m}:{BH+4*m+3}], v18 offset:{64*(1-rr) + 512*m}")
        issued_lo = False
        for mx in range(8):
            k(f"s_waitcnt lgkmcnt({14 - 2*mx})" if mx < 7 else "s_waitcnt lgkmcnt(0)")
            if mx == 7 and USE_KLO:
                for m in range(8):
                    k(f"ds_read_b128 v[{BL+4*m}:{BL+4*m+3}], v18 offset:{64*(1-rr) + 512*m + KSZ}")
            for m in range(8):
                for mp in range(8):
                    if max(m, mp) == mx and m + mp <= 7:
                        a = ACC + 4*(m+mp)
                        k(f"v_mfma_f32_16x16x32_bf16 v[{a}:{a+3}], v[{AF+4*m}:{AF+4*m+3}], v[{BH+4*mp}:{BH+4*mp+3}], v[{a}:{a+3}]")
        if USE_KLO:
            for mp in range(8):
                k(f"s_waitcnt lgkmcnt({7-mp})")
                for m in range(8 - mp):
                    a = ACC + 4*(m+mp)
                    k(f"v_mfma_f32_16x16x32_bf16 v[{a}:{a+3}], v[{AF+4*m}:{AF+4*m+3}], v[{BL+4*mp}:{BL+4*mp+3}], v[{a}:{a+3}]")
    k(f"""v_lshlrev_b32 v20, 4, v1
v_lshl_add_u32 v21, v2, 13, v20
v_lshl_add_u32 v20, v2, 11, v20
v_add_u32 v20, {RED}, v20
v_add_u32 v21, {RED}, v21""")
    for I in range(8):
        k(f"ds_write_b128 v21, v[{ACC+4*I}:{ACC+4*I+3}] offset:{1024*I}")
    k(f"""v_lshlrev_b32 v22, 5, v3
v_lshl_add_u32 v22, v4, 3, v22
v_lshl_add_u32 v22, v2, 10, v22
v_add_u32 v23, s4, v22
s_waitcnt lgkmcnt(0)
s_barrier""")
    for ii in range(2):
        for w in range(4):
            b = 96 + 16*ii + 4*w
            k(f"ds_read_b128 v[{b}:{b+3}], v20 offset:{8192*w + 1024*ii}")
        k(f"ds_read_b64 v[{128+2*ii}:{129+2*ii}], v22 offset:{32 + 512*ii}")
    for ii in range(2):
        b = 96 + 16*ii
        k(f"s_waitcnt lgkmcnt({5 if ii == 0 else 0})")
        for r in range(4):
            k(f"v_add_f32 v{b+r}, v{b+r}, v{b+4+r}\nv_add_f32 v{b+8+r}, v{b+8+r}, v{b+12+r}\nv_add_f32 v{b+r}, v{b+r}, v{b+8+r}")
        for pr in range(2):
            y0, y1 = b + 2*pr, b + 2*pr + 1
            hp = 128 + 2*ii + pr
            k(f"v_cvt_pk_bf16_f32 v{b+4}, v{y0}, v{y1}")
            unpack(k, b+4, y0, y1)
            unpack(k, hp, b+5, b+6)
            k(f"""v_mul_f32 v{b+5}, s15, v{b+5}
v_mul_f32 v{b+6}, s15, v{b+6}
v_cvt_pk_bf16_f32 v{b+4}, v{b+5}, v{b+6}""")
            unpack(k, b+4, b+5, b+6)
            k(f"""v_add_f32 v{y0}, v{y0}, v{b+5}
v_add_f32 v{y1}, v{y1}, v{b+6}
v_cvt_pk_bf16_f32 v{b+4}, v{y0}, v{y1}""")
            unpack(k, b+4, y0, y1)
            k(f"""v_mul_f32 v{y0}, s14, v{y0}
v_mul_f32 v{y1}, s14, v{y1}
v_cvt_pk_bf16_f32 v{b+8+pr}, v{y0}, v{y1}""")
        k(f"buffer_store_dwordx2 v[{b+8}:{b+9}], v23, s[68:71], 0 offen offset:{512*ii}")
    k(f"{Lend}:\ns_endpgm")
    return k, (448, 256, K2_LDS)

if __name__ == "__main__":
    ks = [gen_k1(), gen_k2()]
    build(ks, sys.argv[1] if len(sys.argv) > 1 else "full.s")
```

```python
from gen import *
from gen_k2 import gen_k2

GC0 = -2.0 * LOG2E * math.sqrt(2.0 / math.pi)
GC1 = GC0 * 0.044715

def gelu(k, xs, t, vc0, sc1):
    for x, u in zip(xs, t): k(f"v_mul_f32 v{u}, v{x}, v{x}")
    for x, u in zip(xs, t): k(f"v_fma_f32 v{u}, v{u}, s{sc1}, v{vc0}")
    for x, u in zip(xs, t): k(f"v_mul_f32 v{u}, v{u}, v{x}")
    for x, u in zip(xs, t): k(f"v_exp_f32 v{u}, v{u}")
    for x, u in zip(xs, t): k(f"v_add_f32 v{u}, 1.0, v{u}")
    for x, u in zip(xs, t): k(f"v_rcp_f32 v{u}, v{u}")
    for x, u in zip(xs, t): k(f"v_mul_f32 v{x}, v{x}, v{u}")

def rnd4(k, a, p):
    k(f"v_cvt_pk_bf16_f32 v{p}, v{a}, v{a+1}\nv_cvt_pk_bf16_f32 v{p+1}, v{a+2}, v{a+3}")
    unpack(k, p, a, a+1); unpack(k, p+1, a+2, a+3)

def lane_ids(k):
    k("""v_and_b32 v1, 63, v0
v_lshrrev_b32 v2, 6, v0
v_and_b32 v3, 15, v0
v_bfe_u32 v4, v0, 4, 2
v_readfirstlane_b32 s7, v2""")

def tile_ids32(k):
    k("""s_and_b32 s4, s2, 7
s_lshr_b32 s5, s2, 3
s_lshl_b32 s4, s4, 3
s_lshr_b32 s6, s5, 2
s_add_u32 s4, s4, s6
s_lshl_b32 s4, s4, 5
s_and_b32 s5, s5, 3
s_mul_i32 s6, s5, 112""")

def wpiece_voff(k, dst, pv, t1, t2, RB):
    k(f"""v_mul_u32_u24 v{t1}, 0x12493, v{pv}
v_lshrrev_b32 v{t1}, 20, v{t1}
v_mul_u32_u24 v{t2}, 14, v{t1}
v_sub_u32 v{t2}, v{pv}, v{t2}
v_lshlrev_b32 v{dst}, 4, v{t2}
v_and_b32 v{t2}, 4, v{t1}
v_lshlrev_b32 v{t2}, 1, v{t2}
v_and_b32 v{pv}, 8, v{t1}
v_lshrrev_b32 v{pv}, 1, v{pv}
v_and_b32 v{t1}, 0xfffffff3, v{t1}
v_or3_b32 v{t1}, v{t1}, v{t2}, v{pv}
v_mul_u32_u24 v{t1}, {RB}, v{t1}
v_add_u32 v{dst}, v{dst}, v{t1}""")

def wfrag_base(k, dst, t1, t2):
    k(f"""v_lshrrev_b32 v{t1}, 1, v4
v_lshlrev_b32 v{t1}, 4, v{t1}
v_and_b32 v{t2}, 1, v4
v_lshl_add_u32 v{t1}, v{t2}, 2, v{t1}
v_lshrrev_b32 v{t2}, 2, v3
v_add_u32 v{t1}, v{t1}, v{t2}
v_mul_u32_u24 v{dst}, 224, v{t1}
v_and_b32 v{t2}, 3, v3
v_lshl_add_u32 v{dst}, v{t2}, 3, v{dst}""")

def afrag_base64(k, de, do, t1):
    k(f"""v_lshrrev_b32 v{t1}, 1, v3
v_xor_b32 v{t1}, v{t1}, v4
v_lshlrev_b32 v{t1}, 4, v{t1}
v_lshl_add_u32 v{de}, v3, 7, v{t1}
v_xor_b32 v{do}, 64, v{de}""")

def issue_B_resident(k, srdB, vOff, RB, ldsB, sM, sO):
    k(f"s_lshl_b32 s{sM}, s7, 10\ns_add_u32 s{sM}, s{sM}, {ldsB}\ns_mov_b32 s{sO}, 0")
    for j in range(14):
        k(f"s_mov_b32 m0, s{sM}")
        if j < 13: k(f"s_add_u32 s{sM}, s{sM}, 7168")
        else: k("s_nop 0")
        k(f"buffer_load_dwordx4 v{vOff}, s[{srdB}:{srdB+3}], s{sO} offen lds")
        if j < 13: k(f"s_add_u32 s{sO}, s{sO}, {32*RB}")

def mfma_ntile(k, vW, vW2, vAe, vAo, ACC, BUF, stage_waits):
    D = 4
    def reads(s):
        b = BUF + 12 * (s % D)
        if s in stage_waits: k(stage_waits[s])
        w, so = (vW, 7168*s) if s < 8 else (vW2, 7168*(s-8))
        k(f"ds_read_b64_tr_b16 v[{b}:{b+1}], v{w} offset:{so}")
        k(f"ds_read_b64_tr_b16 v[{b+2}:{b+3}], v{w} offset:{so + 1792}")
        va = vAo if s & 1 else vAe
        k(f"ds_read_b128 v[{b+4}:{b+7}], v{va} offset:{4096*(s>>1)}")
        k(f"ds_read_b128 v[{b+8}:{b+11}], v{va} offset:{4096*(s>>1) + 2048}")
    for s in range(D): reads(s)
    for s in range(14):
        b = BUF + 12 * (s % D)
        k(f"s_waitcnt lgkmcnt({4 * (min(D, 14 - s) - 1)})")
        k(f"v_mfma_f32_16x16x32_bf16 v[{ACC}:{ACC+3}], v[{b}:{b+3}], v[{b+4}:{b+7}], v[{ACC}:{ACC+3}]")
        k(f"v_mfma_f32_16x16x32_bf16 v[{ACC+4}:{ACC+7}], v[{b}:{b+3}], v[{b+8}:{b+11}], v[{ACC+4}:{ACC+7}]")
        if s + D < 14: reads(s + D)

K3_B = 0; K3_AZ = 100352; K3_Z2 = 129024; K3_LDS = 157952
def gen_k3():
    k = Kern("k3_kernel")
    Lend = "k3_end"
    k(f"s_cmp_ge_u32 s2, 256\ns_cbranch_scc1 {Lend}")
    k(f"""s_load_dwordx2 s[52:53], s[0:1], 144
s_load_dwordx2 s[16:17], s[0:1], 0
s_load_dwordx2 s[36:37], s[0:1], 80""")
    lane_ids(k); tile_ids32(k)
    k(f"""v_lshl_add_u32 v5, v2, 6, v1
v_lshrrev_b32 v6, 2, v5
v_lshlrev_b32 v6, 12, v6
v_and_b32 v7, 3, v5
v_lshl_add_u32 v6, v7, 4, v6
s_lshl_b32 s8, s4, 1
v_add_u32 v6, s8, v6""")
    wpiece_voff(k, 7, 5, 8, 9, 896)
    k(f"""s_lshl_b32 s9, s6, 1
v_add_u32 v7, s9, v7
v_lshl_add_u32 v5, v2, 2, v4
v_mul_u32_u24 v8, 896, v5
v_lshl_add_u32 v8, v3, 3, v8
s_mul_i32 s10, s4, 896
v_lshlrev_b32 v9, 4, v3
s_waitcnt lgkmcnt(0)""")
    srd(k, 56, S_WS, WS_ZT, ACT_BYTES)
    srd(k, 60, P(0), 0, ACT_BYTES)
    srd(k, 64, P(10), 0, 448*896)
    srd(k, 68, S_WS, 0, WS_MOD1 + 2688*4)
    Lnz = k.label("nz"); Lnb = k.label("nb")
    k(f"s_cmp_eq_u32 s7, 7\ns_cbranch_scc1 {Lnz}")
    k(f"s_lshl_b32 s11, s7, 10\ns_add_u32 s11, s11, {K3_AZ}\ns_mov_b32 s12, 0")
    for j in range(4):
        k(f"s_mov_b32 m0, s11")
        k(f"s_add_u32 s11, s11, 7168" if j < 3 else "s_nop 0")
        k(f"buffer_load_dwordx4 v6, s[56:59], s12 offen lds")
        if j < 3: k(f"s_add_u32 s12, s12, {112*4096}")
    k(f"{Lnz}:")
    RX = 10; C1 = 24; SB = 52
    for i in range(7):
        k(f"buffer_load_dwordx2 v[{RX+2*i}:{RX+2*i+1}], v8, s[60:63], s10 offen offset:{128*i}")
    k(f"s_mov_b32 s11, {WS_MOD1 + 4*448*4}\ns_mov_b32 s12, {WS_MOD + 3*448*4}")
    for i in range(7):
        k(f"buffer_load_dwordx4 v[{C1+4*i}:{C1+4*i+3}], v9, s[68:71], s11 offen offset:{256*i}")
        k(f"buffer_load_dwordx4 v[{SB+4*i}:{SB+4*i+3}], v9, s[68:71], s12 offen offset:{256*i}")
    k(f"s_cmp_eq_u32 s7, 7\ns_cbranch_scc1 {Lnb}")
    issue_B_resident(k, 64, 7, 896, K3_B, 11, 12)
    k(f"{Lnb}:")
    k(f"""v_lshl_add_u32 v80, v2, 2, v4
v_and_b32 v80, 15, v80
v_lshrrev_b32 v81, 2, v2
v_lshrrev_b32 v82, 2, v3
v_lshl_add_u32 v82, v80, 2, v82
v_lshlrev_b32 v82, 6, v82
v_lshl_add_u32 v82, v81, 5, v82
v_and_b32 v83, 3, v3
v_lshl_add_u32 v82, v83, 3, v82
v_add_u32 v82, {K3_AZ}, v82
v_lshl_add_u32 v83, v81, 4, v3
v_mul_u32_u24 v83, 904, v83
v_lshl_add_u32 v83, v80, 3, v83
v_add_u32 v83, {K3_Z2}, v83
v_mul_u32_u24 v84, 904, v5
v_lshl_add_u32 v84, v3, 3, v84
v_add_u32 v84, {K3_Z2}, v84
s_waitcnt vmcnt(35)
s_barrier""")
    RZ = 86
    for i in range(7):
        k(f"ds_read_b64_tr_b16 v[{RZ+2*i}:{RZ+2*i+1}], v82 offset:{4096*i}")
    for i in range(7):
        k(f"s_waitcnt lgkmcnt({6-i})")
        k(f"ds_write_b64 v83, v[{RZ+2*i}:{RZ+2*i+1}] offset:{128*i}")
    k("s_waitcnt lgkmcnt(0)\ns_barrier")
    for i in range(7):
        k(f"ds_read_b64 v[{RZ+2*i}:{RZ+2*i+1}], v84 offset:{128*i}")
    X = list(range(100, 128)); T = list(range(128, 136)); PX1 = list(range(136, 150)); PH2 = list(range(150, 164))
    k(f"""v_lshrrev_b32 v80, 1, v5
v_and_b32 v80, 7, v80
v_lshrrev_b32 v81, 1, v3
v_xor_b32 v80, v80, v81
v_lshlrev_b32 v80, 4, v80
v_lshl_add_u32 v80, v5, 7, v80
v_and_b32 v81, 1, v3
v_lshl_add_u32 v80, v81, 3, v80
v_add_u32 v80, {K3_AZ}, v80
s_waitcnt vmcnt(28) lgkmcnt(0)""")
    Lw = k.label("w7")
    k(f"s_cmp_lg_u32 s7, 7\ns_cbranch_scc1 {Lw}\ns_waitcnt vmcnt(14)\n{Lw}:")
    for i in range(14):
        a, b = X[2*i], X[2*i+1]
        unpack(k, RX+i, a, b); unpack(k, RZ+i, T[0], T[1])
        k(f"v_add_f32 v{a}, v{a}, v{T[0]}\nv_add_f32 v{b}, v{b}, v{T[1]}\nv_cvt_pk_bf16_f32 v{PX1[i]}, v{a}, v{b}")
        unpack(k, PX1[i], a, b)
    mb, rinv = ln_stats(k, X, T)
    ln_apply(k, X, mb, rinv, PH2, keep=True)
    k("s_waitcnt vmcnt(14)")
    Lw = k.label("w7")
    k(f"s_cmp_lg_u32 s7, 7\ns_cbranch_scc1 {Lw}\ns_waitcnt vmcnt(0)\n{Lw}:")
    for i in range(14):
        a, b = X[2*i], X[2*i+1]; p = PH2[i]
        k(f"v_mul_f32 v{a}, v{a}, v{C1+2*i}\nv_mul_f32 v{b}, v{b}, v{C1+2*i+1}\nv_cvt_pk_bf16_f32 v{p}, v{a}, v{b}")
        unpack(k, p, a, b)
        k(f"v_add_f32 v{a}, v{a}, v{SB+2*i}\nv_add_f32 v{b}, v{b}, v{SB+2*i+1}\nv_cvt_pk_bf16_f32 v{p}, v{a}, v{b}")
        unpack(k, p, a, b)
    mb, rinv = ln_stats(k, X, T)
    PA = list(range(RX, RX+14))
    ln_apply(k, X, mb, rinv, PA)
    for i in range(7):
        k(f"ds_write_b64 v80, v[{PA[2*i]}:{PA[2*i+1]}] offset:{4096*i}")
    wfrag_base(k, 80, 81, 82)
    k(f"v_lshl_add_u32 v80, v2, 5, v80\nv_add_u32 v86, {8*7168}, v80")
    afrag_base64(k, 81, 82, 83)
    k(f"v_add_u32 v81, {K3_AZ}, v81\nv_add_u32 v82, {K3_AZ}, v82")
    ACC = 24; BUF = 32
    for i in range(8): k(f"v_mov_b32 v{ACC+i}, 0")
    srd(k, 72, S_WS, WS_G, ACT_BYTES)
    k("s_waitcnt vmcnt(0) lgkmcnt(0)\ns_barrier")
    Lst = k.label("st")
    k(f"s_cmp_eq_u32 s7, 7\ns_cbranch_scc1 {Lst}")
    mfma_ntile(k, 80, 86, 81, 82, ACC, BUF, {})
    k(f"""v_mov_b32 v84, {f2u(GC0)}
s_mov_b32 s11, {f2u(GC1)}
v_add_u32 v85, s4, v3
v_mul_u32_u24 v85, 896, v85
v_lshl_add_u32 v85, v4, 3, v85
v_lshl_add_u32 v85, v2, 5, v85""")
    for mt in range(2):
        a = ACC + 4*mt
        rnd4(k, a, 40)
        gelu(k, [a, a+1, a+2, a+3], [42, 43, 44, 45], 84, 11)
        k(f"v_cvt_pk_bf16_f32 v{46+2*mt}, v{a}, v{a+1}\nv_cvt_pk_bf16_f32 v{47+2*mt}, v{a+2}, v{a+3}")
        k(f"s_mul_i32 s12, {mt}, {16*896}\ns_add_u32 s12, s12, s9")
        k(f"buffer_store_dwordx2 v[{46+2*mt}:{47+2*mt}], v85, s[72:75], s12 offen")
    k(f"{Lst}:")
    L1 = k.label("c1")
    k(f"s_cmp_gt_u32 s5, 1\ns_cbranch_scc1 {Lend}\ns_cmp_eq_u32 s5, 1\ns_cbranch_scc1 {L1}")
    srd(k, 72, S_WS, WS_X1, ACT_BYTES)
    for i in range(7):
        k(f"buffer_store_dwordx2 v[{PX1[2*i]}:{PX1[2*i+1]}], v8, s[72:75], s10 offen offset:{128*i}")
    k("s_endpgm")
    k(f"{L1}:")
    srd(k, 72, S_WS, WS_H2, ACT_BYTES)
    for i in range(7):
        k(f"buffer_store_dwordx2 v[{PH2[2*i]}:{PH2[2*i+1]}], v8, s[72:75], s10 offen offset:{128*i}")
    k(f"{Lend}:\ns_endpgm")
    return k, (256, 512, K3_LDS)


def allred4(k, v, t):
    k(f"""v_mov_b32 v{t}, v{v}
v_permlane32_swap_b32 v{t}, v{v}
v_add_f32 v{v}, v{v}, v{t}
v_mov_b32 v{t}, v{v}
v_permlane16_swap_b32 v{t}, v{v}
v_add_f32 v{v}, v{v}, v{t}""")

K4_B = 0; K4_A = 100352; K4_ST = 133120; K4_LDS = 135168
def gen_k4():
    k = Kern("k4_kernel")
    Lend = "k4_end"
    k(f"s_cmp_ge_u32 s2, 256\ns_cbranch_scc1 {Lend}")
    k(f"""s_load_dwordx2 s[52:53], s[0:1], 144
s_load_dwordx2 s[38:39], s[0:1], 88""")
    lane_ids(k); tile_ids32(k)
    k("v_lshl_add_u32 v5, v2, 6, v1")
    wpiece_voff(k, 7, 5, 8, 9, 896)
    k(f"""s_lshl_b32 s9, s6, 1
v_add_u32 v7, s9, v7
v_and_b32 v5, 3, v2
v_lshrrev_b32 v6, 3, v1
v_lshl_add_u32 v5, v5, 3, v6
v_lshrrev_b32 v6, 1, v5
v_and_b32 v6, 7, v6
v_and_b32 v8, 7, v1
v_xor_b32 v6, v6, v8
v_lshrrev_b32 v8, 2, v2
v_lshl_add_u32 v6, v8, 3, v6
v_add_u32 v5, s4, v5""")
    for j in range(4):
        d = 10 + j
        k(f"""v_add_u32 v8, {16*j}, v6
v_mul_u32_u24 v9, 0x12493, v8
v_lshrrev_b32 v9, 20, v9
v_lshrrev_b32 v14, 1, v9
v_add_u32 v14, 1, v14
v_and_b32 v9, 1, v9
v_lshlrev_b32 v9, 1, v9
v_subrev_u32 v9, 1, v9
v_mul_i32_i24 v9, v9, v14
v_add_u32 v9, v5, v9
v_mul_i32_i24 v{d}, 896, v9
v_lshl_add_u32 v{d}, v8, 4, v{d}""")
    k(f"""v_mov_b32 v8, 0x7ff00000
v_cmp_lt_u32 vcc, 3, v2
v_cndmask_b32 v13, v13, v8, vcc
v_add_u32 v15, s4, v3
v_mul_u32_u24 v15, 896, v15
v_lshl_add_u32 v15, v4, 3, v15
v_lshl_add_u32 v15, v2, 5, v15
s_waitcnt lgkmcnt(0)""")
    srd(k, 56, S_WS, WS_G, ACT_BYTES)
    srd(k, 60, S_WS, WS_H2, ACT_BYTES)
    srd(k, 64, P(11), 0, 448*896)
    srd(k, 68, S_WS, WS_XP, ACT_BYTES)
    srd(k, 72, S_WS, WS_ST, 65536)
    k(f"s_lshl_b32 s11, s7, 10\ns_add_u32 s11, s11, {K4_A}")
    for j in range(4):
        k("s_mov_b32 m0, s11")
        k("s_add_u32 s11, s11, 8192" if j < 3 else "s_nop 0")
        k(f"buffer_load_dwordx4 v{10+j}, s[56:59], 0 offen lds")
    L7 = k.label("w7"); Lc = k.label("comb")
    k(f"s_cmp_eq_u32 s7, 7\ns_cbranch_scc1 {L7}")
    k(f"s_add_u32 s10, s9, {16*896}")
    k(f"buffer_load_dwordx2 v[16:17], v15, s[60:63], s9 offen\nbuffer_load_dwordx2 v[18:19], v15, s[60:63], s10 offen")
    issue_B_resident(k, 64, 7, 896, K4_B, 11, 12)
    wfrag_base(k, 80, 81, 82)
    k(f"v_lshl_add_u32 v80, v2, 5, v80\nv_add_u32 v86, {8*7168}, v80")
    afrag_base64(k, 81, 82, 83)
    k(f"v_add_u32 v81, {K4_A}, v81\nv_add_u32 v82, {K4_A}, v82")
    ACC = 24; BUF = 32
    for i in range(8): k(f"v_mov_b32 v{ACC+i}, 0")
    mfma_ntile(k, 80, 86, 81, 82, ACC, BUF, {0: "s_waitcnt vmcnt(9)\ns_barrier", 5: "s_waitcnt vmcnt(4)\ns_barrier", 10: "s_waitcnt vmcnt(0)\ns_barrier"})
    k(f"""v_mul_u32_u24 v84, 56, v3
v_lshl_add_u32 v84, v2, 3, v84
v_add_u32 v84, {K4_ST}, v84""")
    for mt in range(2):
        a = ACC + 4*mt
        rnd4(k, a, 40)
        unpack(k, 16+2*mt, 42, 43); unpack(k, 17+2*mt, 44, 45)
        for r in range(4): k(f"v_add_f32 v{a+r}, v{a+r}, v{42+r}")
        rnd4(k, a, 46+2*mt)
        k(f"buffer_store_dwordx2 v[{46+2*mt}:{47+2*mt}], v15, s[68:71], s{9+mt} offen")
        k(f"v_add_f32 v50, v{a}, v{a+1}\nv_add_f32 v51, v{a+2}, v{a+3}\nv_add_f32 v50, v50, v51")
        allred4(k, 50, 52)
        k(f"v_mul_f32 v50, {f2u(1.0/16)}, v50")
        for r in range(4): k(f"v_sub_f32 v{42+r}, v{a+r}, v50")
        k("v_mul_f32 v51, v42, v42\nv_fmac_f32 v51, v43, v43\nv_fmac_f32 v51, v44, v44\nv_fmac_f32 v51, v45, v45")
        allred4(k, 51, 52)
        k(f"ds_write_b64 v84, v[50:51] offset:{16*56*mt}")
    k(f"s_waitcnt lgkmcnt(0)\ns_barrier\ns_endpgm")
    k(f"{L7}:")
    k(f"""s_waitcnt vmcnt(0)
s_barrier
s_barrier
s_barrier
v_and_b32 v5, 31, v1
v_mul_u32_u24 v6, 56, v5
v_add_u32 v6, {K4_ST}, v6
v_add_u32 v7, s4, v5
v_lshlrev_b32 v7, 5, v7
s_lshl_b32 s10, s5, 3
s_barrier""")
    for w in range(7):
        k(f"ds_read_b64 v[{10+2*w}:{11+2*w}], v6 offset:{8*w}")
    k("s_waitcnt lgkmcnt(0)")
    k("v_add_f32 v24, v10, v12\nv_add_f32 v25, v14, v16\nv_add_f32 v26, v18, v20\nv_add_f32 v24, v24, v22\nv_add_f32 v25, v25, v26\nv_add_f32 v24, v24, v25")
    k(f"v_mul_f32 v24, {f2u(1.0/7)}, v24")
    k("v_add_f32 v25, v11, v13\nv_add_f32 v26, v15, v17\nv_add_f32 v27, v19, v21\nv_add_f32 v25, v25, v23\nv_add_f32 v26, v26, v27\nv_add_f32 v25, v25, v26\nv_mov_b32 v26, 0")
    for w in range(7):
        k(f"v_sub_f32 v27, v{10+2*w}, v24\nv_fmac_f32 v26, v27, v27")
    k(f"v_fmac_f32 v25, {f2u(16.0)}, v26")
    k("buffer_store_dwordx2 v[24:25], v7, s[72:75], s10 offen")
    k(f"{Lend}:\ns_endpgm")
    return k, (256, 512, K4_LDS)

K5_SLOT = 30720; K5_TRASH = 5 * K5_SLOT; K5_LDS = K5_TRASH + 1024
def gen_k5():
    k = Kern("k5_kernel")
    Lend = "k5_end"
    k(f"s_cmp_ge_u32 s2, 256\ns_cbranch_scc1 {Lend}")
    k(f"""s_load_dwordx2 s[52:53], s[0:1], 144
s_load_dwordx2 s[40:41], s[0:1], 96""")
    lane_ids(k)
    k("""s_and_b32 s4, s2, 7
s_lshr_b32 s5, s2, 3
s_lshl_b32 s4, s4, 1
s_lshr_b32 s6, s5, 4
s_add_u32 s4, s4, s6
s_lshl_b32 s4, s4, 7
s_and_b32 s5, s5, 15
s_mul_i32 s6, s5, 112
s_lshl_b32 s9, s6, 1
s_lshr_b32 s8, s7, 2""")
    k(f"""v_lshrrev_b32 v5, 3, v1
v_lshl_add_u32 v5, v2, 3, v5
v_lshrrev_b32 v6, 1, v5
v_and_b32 v6, 7, v6
v_and_b32 v7, 7, v1
v_xor_b32 v6, v6, v7
v_add_u32 v5, s4, v5
v_mul_u32_u24 v10, 896, v5
v_lshl_add_u32 v10, v6, 4, v10
v_add_u32 v11, {64*896}, v10
v_lshl_add_u32 v5, v2, 6, v1""")
    wpiece_voff(k, 12, 5, 8, 9, 3584)
    k(f"v_lshl_add_u32 v5, v2, 6, v1\nv_add_u32 v5, 512, v5")
    wpiece_voff(k, 13, 5, 8, 9, 3584)
    k(f"""v_add_u32 v12, s9, v12
v_add_u32 v13, s9, v13
v_mov_b32 v8, 0x7ff00000
v_cmp_lt_u32 vcc, 5, v2
v_cndmask_b32 v13, v13, v8, vcc
v_and_b32 v5, 3, v2
v_lshl_add_u32 v5, v5, 5, v3
v_add_u32 v5, s4, v5
v_lshlrev_b32 v6, 5, v5
v_lshrrev_b32 v7, 2, v2
v_lshlrev_b32 v7, 8, v7
v_lshl_add_u32 v7, v4, 4, v7
s_lshl_b32 s10, s6, 2
s_waitcnt lgkmcnt(0)""")
    srd(k, 56, S_WS, WS_XP, ACT_BYTES)
    srd(k, 60, P(12), 0, 448*3584)
    srd(k, 64, S_WS, WS_ST, 65536)
    srd(k, 68, S_WS, WS_CS3, 1792*4)
    srd(k, 72, S_WS, WS_H3, 2048*3584)
    STR = 16; CSR = 32
    for mt in range(2):
        k(f"buffer_load_dwordx4 v[{STR+8*mt}:{STR+8*mt+3}], v6, s[64:67], 0 offen offset:{512*mt}")
        k(f"buffer_load_dwordx4 v[{STR+8*mt+4}:{STR+8*mt+7}], v6, s[64:67], 0 offen offset:{512*mt+16}")
    for i in range(4):
        k(f"buffer_load_dwordx4 v[{CSR+4*i}:{CSR+4*i+3}], v7, s[68:71], s10 offen offset:{64*i}")
    k(f"""s_lshl_b32 s76, s7, 10
s_cmp_gt_u32 s7, 5
s_cselect_b32 s77, 0, 1
s_cselect_b32 s78, {K5_TRASH}, 0""")
    def issue(c):
        sb = (c % 5) * K5_SLOT
        k(f"""s_add_u32 m0, s76, {sb}
s_mov_b32 s79, {128*c}
buffer_load_dwordx4 v10, s[56:59], s79 offen lds
s_add_u32 m0, s76, {sb + 8192}
s_mov_b32 s80, {64*3584*c}
buffer_load_dwordx4 v11, s[56:59], s79 offen lds
s_add_u32 m0, s76, {sb + 16384}
s_add_u32 s81, s76, {sb + 16384 + 8192}
buffer_load_dwordx4 v12, s[60:63], s80 offen lds
s_mul_i32 s81, s81, s77
s_add_u32 m0, s81, s78
s_nop 0
buffer_load_dwordx4 v13, s[60:63], s80 offen lds""")
    for c in range(5): issue(c)
    wfrag_base(k, 48, 49, 50)
    k(f"v_lshrrev_b32 v49, 2, v2\nv_lshl_add_u32 v48, v49, 7, v48\nv_add_u32 v48, 16384, v48")
    afrag_base64(k, 49, 50, 51)
    k(f"v_and_b32 v51, 3, v2\nv_lshlrev_b32 v51, 12, v51\nv_add_u32 v49, v49, v51\nv_add_u32 v50, v50, v51")
    ACC = 64; AB = 96; WB_ = 112
    for i in range(32): k(f"v_mov_b32 v{ACC+i}, 0")
    waits = [16, 12, 12, 12, 8, 4, 0]
    for c in range(7):
        k(f"s_waitcnt vmcnt({waits[c]})\ns_barrier")
        if c in (1, 2): issue(c + 4)
        sb = (c % 5) * K5_SLOT
        k(f"v_add_u32 v52, {sb}, v48\nv_add_u32 v53, {sb}, v49\nv_add_u32 v54, {sb}, v50")
        def rd(s):
            ab = AB + 8*s; wb = WB_ + 16*s
            va = 54 if s else 53
            k(f"ds_read_b128 v[{ab}:{ab+3}], v{va}\nds_read_b128 v[{ab+4}:{ab+7}], v{va} offset:2048")
            for i in range(3):
                k(f"ds_read_b64_tr_b16 v[{wb+4*i}:{wb+4*i+1}], v52 offset:{7168*s + 32*i}")
                k(f"ds_read_b64_tr_b16 v[{wb+4*i+2}:{wb+4*i+3}], v52 offset:{7168*s + 32*i + 1792}")
        def mm(s, i):
            ab = AB + 8*s; wb = WB_ + 16*s + 4*i
            for mt in range(2):
                a = ACC + 16*mt + 4*i
                k(f"v_mfma_f32_16x16x32_bf16 v[{a}:{a+3}], v[{wb}:{wb+3}], v[{ab+4*mt}:{ab+4*mt+3}], v[{a}:{a+3}]")
        rd(0)
        k("s_waitcnt lgkmcnt(4)"); mm(0, 0)
        rd(1)
        k("s_waitcnt lgkmcnt(10)"); mm(0, 1)
        k("s_waitcnt lgkmcnt(8)"); mm(0, 2)
        k("s_waitcnt lgkmcnt(4)"); mm(1, 0)
        Lsk = k.label("sk")
        k(f"s_cmp_eq_u32 s8, 1\ns_cbranch_scc1 {Lsk}")
        for s in range(2):
            wb = WB_ + 16*s + 12
            k(f"ds_read_b64_tr_b16 v[{wb}:{wb+1}], v52 offset:{7168*s + 96}")
            k(f"ds_read_b64_tr_b16 v[{wb+2}:{wb+3}], v52 offset:{7168*s + 96 + 1792}")
        k("s_waitcnt lgkmcnt(2)"); mm(0, 3)
        k("s_waitcnt lgkmcnt(0)"); mm(1, 3)
        k(f"{Lsk}:")
        k("s_waitcnt lgkmcnt(0)"); mm(1, 1); mm(1, 2)
    k(f"""v_mov_b32 v48, {f2u(GC0)}
s_mov_b32 s11, {f2u(GC1)}
v_mul_u32_u24 v49, 3584, v5
v_lshrrev_b32 v50, 2, v2
v_lshl_add_u32 v49, v50, 7, v49
v_lshl_add_u32 v49, v4, 3, v49
s_add_u32 s10, s9, {16*3584}""")
    for mt in range(2):
        b = STR + 8*mt
        k(f"""v_add_f32 v50, v{b}, v{b+2}
v_add_f32 v51, v{b+4}, v{b+6}
v_add_f32 v50, v50, v51
v_mul_f32 v50, 0.25, v50
v_add_f32 v51, v{b+1}, v{b+3}
v_add_f32 v52, v{b+5}, v{b+7}
v_add_f32 v51, v51, v52
v_sub_f32 v52, v{b}, v50
v_mul_f32 v53, v52, v52
v_sub_f32 v52, v{b+2}, v50
v_fmac_f32 v53, v52, v52
v_sub_f32 v52, v{b+4}, v50
v_fmac_f32 v53, v52, v52
v_sub_f32 v52, v{b+6}, v50
v_fmac_f32 v53, v52, v52
v_fmac_f32 v51, {f2u(112.0)}, v53
v_mul_f32 v51, {f2u(1.0/448)}, v51""")
        rnd1(k, 51)
        k(f"v_add_f32 v51, {f2u(1e-5)}, v51")
        rnd1(k, 51)
        k("v_sqrt_f32 v51, v51")
        rnd1(k, 51)
        k("v_rcp_f32 v51, v51")
        rnd1(k, 50)
        for i in range(4):
            if i == 3:
                Lsk = k.label("sk")
                k(f"s_cmp_eq_u32 s8, 1\ns_cbranch_scc1 {Lsk}")
            a = ACC + 16*mt + 4*i
            for r in range(4):
                k(f"v_fma_f32 v{a+r}, -v50, v{CSR+4*i+r}, v{a+r}")
            for r in range(4):
                k(f"v_mul_f32 v{a+r}, v{a+r}, v51")
            rnd4(k, a, 52)
            gelu(k, [a, a+1, a+2, a+3], [54, 55, 56, 57], 48, 11)
            p = 58 + 2*(i % 2)
            k(f"v_cvt_pk_bf16_f32 v{p}, v{a}, v{a+1}\nv_cvt_pk_bf16_f32 v{p+1}, v{a+2}, v{a+3}")
            k(f"buffer_store_dwordx2 v[{p}:{p+1}], v49, s[72:75], s{9+mt} offen offset:{32*i}")
            if i == 3: k(f"{Lsk}:")
    k(f"{Lend}:\ns_endpgm")
    return k, (256, 512, K5_LDS)

K6_SLOT = 36864; K6_TRASH = 4 * K6_SLOT; K6_LDS = K6_TRASH + 1024
def gen_k6():
    k = Kern("k6_kernel")
    Lend = "k6_end"
    k(f"s_cmp_ge_u32 s2, 256\ns_cbranch_scc1 {Lend}")
    k(f"""s_load_dwordx2 s[52:53], s[0:1], 144
s_load_dwordx2 s[42:43], s[0:1], 104
s_load_dwordx2 s[48:49], s[0:1], 128""")
    lane_ids(k); tile_ids32(k)
    k(f"""s_lshl_b32 s9, s6, 1
s_lshr_b32 s8, s7, 2
v_lshl_add_u32 v5, v2, 2, v4
v_and_b32 v6, 15, v5
v_xor_b32 v6, v6, v3
v_add_u32 v5, s4, v5
v_mul_u32_u24 v10, 3584, v5
v_lshl_add_u32 v10, v6, 4, v10""")
    for j in range(4):
        k(f"v_lshl_add_u32 v5, v2, 6, v1")
        if j: k(f"v_add_u32 v5, {512*j}, v5")
        wpiece_voff(k, 11+j, 5, 8, 9, 896)
        k(f"v_add_u32 v{11+j}, s9, v{11+j}")
    k(f"""v_mov_b32 v8, 0x7ff00000
v_cmp_lt_u32 vcc, 3, v2
v_cndmask_b32 v14, v14, v8, vcc
v_add_u32 v15, s4, v3
v_mul_u32_u24 v15, 896, v15
v_lshl_add_u32 v15, v4, 3, v15
v_lshl_add_u32 v15, v2, 5, v15
v_lshlrev_b32 v7, 4, v4
v_lshl_add_u32 v7, v2, 6, v7
s_lshl_b32 s12, s6, 2
s_add_u32 s12, s12, {WS_MOD + 5*448*4}
s_add_u32 s10, s9, {16*896}
s_waitcnt lgkmcnt(0)""")
    srd(k, 56, S_WS, WS_H3, 2048*3584)
    srd(k, 60, P(13), 0, 1792*896)
    srd(k, 64, S_WS, WS_XP, ACT_BYTES)
    srd(k, 68, S_WS, WS_X1, ACT_BYTES)
    srd(k, 72, S_WS, 0, WS_MOD + 2688*4)
    srd(k, 84, S_OUT, 0, ACT_BYTES)
    for mt in range(2):
        k(f"buffer_load_dwordx2 v[{16+2*mt}:{17+2*mt}], v15, s[64:67], s{9+mt} offen")
        k(f"buffer_load_dwordx2 v[{20+2*mt}:{21+2*mt}], v15, s[68:71], s{9+mt} offen")
    k(f"buffer_load_dwordx4 v[24:27], v7, s[72:75], s12 offen")
    k(f"""s_lshl_b32 s76, s7, 10
s_cmp_gt_u32 s7, 3
s_cselect_b32 s77, 0, 1
s_cselect_b32 s78, {K6_TRASH}, 0
s_mov_b32 s79, 0
s_mov_b32 s80, 0
s_mov_b32 s82, 0
s_mov_b32 s83, 0""")
    def issue():
        k(f"""s_add_u32 s81, s76, s82
s_mov_b32 m0, s81
s_add_u32 s81, s81, 8192
buffer_load_dwordx4 v10, s[56:59], s79 offen lds
s_mov_b32 m0, s81
s_add_u32 s81, s81, 8192
buffer_load_dwordx4 v11, s[60:63], s80 offen lds
s_mov_b32 m0, s81
s_add_u32 s81, s81, 8192
buffer_load_dwordx4 v12, s[60:63], s80 offen lds
s_mov_b32 m0, s81
s_add_u32 s81, s81, 8192
buffer_load_dwordx4 v13, s[60:63], s80 offen lds
s_mul_i32 s81, s81, s77
s_add_u32 m0, s81, s78
s_add_u32 s83, s83, 1
buffer_load_dwordx4 v14, s[60:63], s80 offen lds
s_add_u32 s79, s79, 256
s_add_u32 s80, s80, {128*896}
s_cmp_ge_u32 s83, 14
s_cselect_b32 s79, 0x7ff00000, s79
s_cselect_b32 s80, 0x7ff00000, s80
s_add_u32 s82, s82, {K6_SLOT}
s_cmp_ge_u32 s82, {4*K6_SLOT}
s_cselect_b32 s82, 0, s82""")
    for c in range(3): issue()
    wfrag_base(k, 28, 29, 30)
    k(f"""v_lshrrev_b32 v29, 2, v2
v_lshl_add_u32 v28, v29, 7, v28
v_and_b32 v29, 3, v2
v_mul_u32_u24 v30, 7168, v29
v_add_u32 v28, v28, v30
v_add_u32 v28, 8192, v28
v_lshl_add_u32 v30, v29, 2, v4
v_xor_b32 v30, v30, v3
v_lshlrev_b32 v30, 4, v30
v_lshl_add_u32 v29, v3, 8, v30
s_mov_b32 s13, 0
s_mov_b32 s14, 14""")
    ACC = 32; AB = 64; WB_ = 72
    for i in range(32): k(f"v_mov_b32 v{ACC+i}, 0")
    Lloop = k.label("loop")
    k(f"{Lloop}:")
    k(f"s_waitcnt vmcnt(10)\ns_barrier")
    k(f"v_add_u32 v30, s13, v28\nv_add_u32 v31, s13, v29")
    k(f"ds_read_b128 v[{AB}:{AB+3}], v31\nds_read_b128 v[{AB+4}:{AB+7}], v31 offset:4096")
    for i in range(3):
        k(f"ds_read_b64_tr_b16 v[{WB_+4*i}:{WB_+4*i+1}], v30 offset:{32*i}")
        k(f"ds_read_b64_tr_b16 v[{WB_+4*i+2}:{WB_+4*i+3}], v30 offset:{32*i + 1792}")
    issue()
    def mm(i):
        wb = WB_ + 4*i
        for mt in range(2):
            a = ACC + 16*mt + 4*i
            k(f"v_mfma_f32_16x16x32_bf16 v[{a}:{a+3}], v[{wb}:{wb+3}], v[{AB+4*mt}:{AB+4*mt+3}], v[{a}:{a+3}]")
    k("s_waitcnt lgkmcnt(4)"); mm(0)
    Lsk = k.label("sk")
    k(f"s_cmp_eq_u32 s8, 1\ns_cbranch_scc1 {Lsk}")
    k(f"ds_read_b64_tr_b16 v[{WB_+12}:{WB_+13}], v30 offset:96\nds_read_b64_tr_b16 v[{WB_+14}:{WB_+15}], v30 offset:{96+1792}")
    k("s_waitcnt lgkmcnt(0)"); mm(3)
    k(f"{Lsk}:")
    k("s_waitcnt lgkmcnt(0)"); mm(1); mm(2)
    k(f"""s_add_u32 s13, s13, {K6_SLOT}
s_cmp_ge_u32 s13, {4*K6_SLOT}
s_cselect_b32 s13, 0, s13
s_sub_u32 s14, s14, 1
s_cmp_lg_u32 s14, 0
s_cbranch_scc1 {Lloop}""")
    k(f"""v_lshlrev_b32 v30, 4, v1
v_lshl_add_u32 v31, v2, 13, v30
v_lshrrev_b32 v28, 2, v2
v_lshl_add_u32 v30, v28, 15, v30
v_and_b32 v28, 3, v2
v_lshl_add_u32 v30, v28, 10, v30
s_waitcnt vmcnt(0)
s_barrier""")
    for t in range(8):
        k(f"ds_write_b128 v31, v[{ACC+4*t}:{ACC+4*t+3}] offset:{1024*t}")
    k(f"s_waitcnt lgkmcnt(0)\ns_barrier\ns_cmp_eq_u32 s7, 7\ns_cbranch_scc1 {Lend}")
    for mt in range(2):
        for ks in range(4):
            b = 32 + 16*mt + 4*ks
            k(f"ds_read_b128 v[{b}:{b+3}], v30 offset:{8192*ks + 4096*mt}")
    for mt in range(2):
        b = 32 + 16*mt
        k(f"s_waitcnt lgkmcnt({4 if mt == 0 else 0})")
        for r in range(4):
            k(f"v_add_f32 v{b+r}, v{b+r}, v{b+4+r}\nv_add_f32 v{b+8+r}, v{b+8+r}, v{b+12+r}\nv_add_f32 v{b+r}, v{b+r}, v{b+8+r}")
        rnd4(k, b, 64)
        unpack(k, 16+2*mt, 66, 67); unpack(k, 17+2*mt, 68, 69)
        for r in range(4): k(f"v_add_f32 v{b+r}, v{b+r}, v{66+r}")
        rnd4(k, b, 64)
        for r in range(4): k(f"v_mul_f32 v{b+r}, v{b+r}, v{24+r}")
        rnd4(k, b, 64)
        unpack(k, 20+2*mt, 66, 67); unpack(k, 21+2*mt, 68, 69)
        for r in range(4): k(f"v_add_f32 v{b+r}, v{b+r}, v{66+r}")
        k(f"v_cvt_pk_bf16_f32 v{70+2*mt}, v{b}, v{b+1}\nv_cvt_pk_bf16_f32 v{71+2*mt}, v{b+2}, v{b+3}")
        k(f"buffer_store_dwordx2 v[{70+2*mt}:{71+2*mt}], v15, s[84:87], s{9+mt} offen")
    k(f"{Lend}:\ns_endpgm")
    return k, (256, 512, K6_LDS)

if __name__ == "__main__":
    ks = [gen_k1(), gen_k2(), gen_k3(), gen_k4(), gen_k5(), gen_k6()]
    build(ks, sys.argv[1] if len(sys.argv) > 1 else "full.s")
```

```python
import sys, math, os, subprocess
from asmlib import *

MB = 1 << 20
WS_MOD = 0; WS_CS3 = 16384; WS_MOD1 = 32768; WS_ST = 65536
WS_LNT = 1 * MB; WS_KH = 3 * MB; WS_KL = 5 * MB; WS_ZT = 7 * MB; WS_X1 = 9 * MB; WS_H2 = 11 * MB
WS_G = 13 * MB; WS_XP = 15 * MB; WS_H3 = 17 * MB
WS_PW1 = 25 * MB; WS_PW2 = 25 * MB + 512 * 1024; WS_PW3 = 26 * MB; WS_PW4 = 28 * MB
WS_STAMP = 31 * MB
ACT_BYTES = 2048 * 448 * 2
LOG2E = 1.4426950408889634
USE_KLO = bool(int(os.environ.get("KLO", "1")))
STAMPS = bool(int(os.environ.get("STAMPS", "0")))
GC0 = -2.0 * LOG2E * math.sqrt(2.0 / math.pi)
GC1 = GC0 * 0.044715
P = lambda i: 16 + 2 * i
S_OUT = 48; S_WS = 52
OOB = "0x7ff00000"
H3MOD = os.environ.get("H3MOD", "")
PF3 = os.environ.get("PF3", "none")
PF4 = os.environ.get("PF4", "none")
K6DW = int(os.environ.get("K6DW", "16"))

def stamp(k, i):
    if STAMPS: k(f"s_memrealtime s[{88+2*i}:{89+2*i}]")
def stamp_flush(k, kid, n):
    if not STAMPS: return
    k(f"s_memrealtime s[{88+2*n}:{89+2*n}]")
    Ls = k.label("nost")
    k(f"v_lshrrev_b32 v1, 6, v0\nv_readfirstlane_b32 s3, v1\ns_cmp_lg_u32 s3, 0\ns_cbranch_scc1 {Ls}")
    k(f"s_load_dwordx2 s[80:81], s[0:1], 144\ns_waitcnt lgkmcnt(0)")
    k(f"s_add_u32 s80, s80, {WS_STAMP + kid*65536}\ns_addc_u32 s81, s81, 0\ns_mov_b32 s82, 65536\ns_mov_b32 s83, 0x00020000")
    k(f"s_lshl_b32 s3, s2, 5\nv_mov_b32 v1, s3")
    for i in range(n+1):
        k(f"v_mov_b32 v2, s{88+2*i}\nbuffer_store_dword v2, v1, s[80:83], 0 offen offset:{4*i}")
    k(f"{Ls}:")

def load_kernargs(k):
    k("""s_load_dwordx16 s[16:31], s[0:1], 0
s_load_dwordx16 s[32:47], s[0:1], 64
s_load_dwordx4 s[48:51], s[0:1], 128
s_load_dwordx2 s[52:53], s[0:1], 144""")

def srd(k, d, base, off, size):
    if off: k(f"s_add_u32 s{d}, s{base}, {off}\ns_addc_u32 s{d+1}, s{base+1}, 0")
    else: k(f"s_mov_b32 s{d}, s{base}\ns_mov_b32 s{d+1}, s{base+1}")
    k(f"s_mov_b32 s{d+2}, {size}\ns_mov_b32 s{d+3}, 0x00020000")

def lane_ids(k):
    k("""v_and_b32 v1, 63, v0
v_lshrrev_b32 v2, 6, v0
v_and_b32 v3, 15, v0
v_bfe_u32 v4, v0, 4, 2
v_readfirstlane_b32 s7, v2""")

def dpp_sum16(k, v, t):
    k(f"""v_add_f32_dpp v{t}, v{v}, v{v} row_ror:8 row_mask:0xf bank_mask:0xf
v_add_f32_dpp v{v}, v{t}, v{t} row_ror:4 row_mask:0xf bank_mask:0xf
v_add_f32_dpp v{t}, v{v}, v{v} row_ror:2 row_mask:0xf bank_mask:0xf
v_add_f32_dpp v{v}, v{t}, v{t} row_ror:1 row_mask:0xf bank_mask:0xf""")
def sum32(k, v, t):
    dpp_sum16(k, v, t)
    k(f"v_mov_b32 v{t}, v{v}\nv_permlane16_swap_b32 v{t}, v{v}\nv_add_f32 v{v}, v{v}, v{t}")
def allred4(k, v, t):
    k(f"""v_mov_b32 v{t}, v{v}
v_permlane32_swap_b32 v{t}, v{v}
v_add_f32 v{v}, v{v}, v{t}
v_mov_b32 v{t}, v{v}
v_permlane16_swap_b32 v{t}, v{v}
v_add_f32 v{v}, v{v}, v{t}""")

def rnd(k, v): k(f"v_cvt_pk_bf16_f32 v{v}, 0, v{v}")
def unpack(k, p, a, b): k(f"v_lshlrev_b32 v{a}, 16, v{p}\nv_and_b32 v{b}, 0xffff0000, v{p}")
def pack(k, p, a, b): k(f"v_cvt_pk_bf16_f32 v{p}, v{a}, v{b}")

def den_from_var(k, v):
    rnd(k, v); k(f"v_add_f32 v{v}, {f2u(1e-5)}, v{v}"); rnd(k, v)
    k(f"v_sqrt_f32 v{v}, v{v}"); rnd(k, v); k(f"v_rcp_f32 v{v}, v{v}")

def ln_stats(k, X, T, red):
    a = T[0:4]; t = T[4]; mean = T[5]; mb = T[6]; rinv = T[7]
    n = len(X)
    for c in range(4): k(f"v_add_f32 v{a[c]}, v{X[c]}, v{X[c+4]}")
    for i in range(8, n): k(f"v_add_f32 v{a[i%4]}, v{a[i%4]}, v{X[i]}")
    k(f"v_add_f32 v{a[0]}, v{a[0]}, v{a[1]}\nv_add_f32 v{a[2]}, v{a[2]}, v{a[3]}\nv_add_f32 v{mean}, v{a[0]}, v{a[2]}")
    red(k, mean, t)
    k(f"v_mul_f32 v{mean}, {f2u(1.0/448)}, v{mean}")
    tt = [t, mb]
    for i in range(n):
        c = i % 4; u = tt[i % 2]
        k(f"v_sub_f32 v{u}, v{X[i]}, v{mean}")
        if i < 4: k(f"v_mul_f32 v{a[c]}, v{u}, v{u}")
        else: k(f"v_fmac_f32 v{a[c]}, v{u}, v{u}")
    k(f"v_add_f32 v{a[0]}, v{a[0]}, v{a[1]}\nv_add_f32 v{a[2]}, v{a[2]}, v{a[3]}\nv_add_f32 v{rinv}, v{a[0]}, v{a[2]}")
    red(k, rinv, t)
    k(f"v_mul_f32 v{rinv}, {f2u(1.0/448)}, v{rinv}")
    den_from_var(k, rinv)
    k(f"v_cvt_pk_bf16_f32 v{mb}, 0, v{mean}")
    return mb, rinv

def ln_apply(k, X, mb, rinv, outP=None):
    for x in X: k(f"v_sub_f32 v{x}, v{x}, v{mb}")
    for x in X: rnd(k, x)
    for x in X: k(f"v_mul_f32 v{x}, v{x}, v{rinv}")
    if outP:
        for i in range(0, len(X), 2): pack(k, outP[i//2], X[i], X[i+1])
    else:
        for x in X: rnd(k, x)

def gelu(k, xs, t, vc0, vc1):
    for x, u in zip(xs, t): k(f"v_mul_f32 v{u}, v{x}, v{x}")
    for x, u in zip(xs, t): k(f"v_fma_f32 v{u}, v{u}, v{vc1}, v{vc0}")
    for x, u in zip(xs, t): k(f"v_mul_f32 v{u}, v{u}, v{x}")
    for x, u in zip(xs, t): k(f"v_exp_f32 v{u}, v{u}")
    for x, u in zip(xs, t): k(f"v_add_f32 v{u}, 1.0, v{u}")
    for x, u in zip(xs, t): k(f"v_rcp_f32 v{u}, v{u}")
    for x, u in zip(xs, t): k(f"v_mul_f32 v{x}, v{x}, v{u}")

class VM:
    def __init__(self, k): self.k = k; self.q = []
    def op(self, tag, text): self.k(text); self.q.append(tag)
    def cnt(self, tag):
        idx = max(i for i, t in enumerate(self.q) if t == tag)
        return len(self.q) - 1 - idx
    def wait(self, tag): self.k(f"s_waitcnt vmcnt({self.cnt(tag)})")

def cmul(k, dr, di, ar, ai, br, bi):
    k(f"""v_mul_f32 v{dr}, v{ar}, v{br}
v_mul_f32 v{di}, v{ar}, v{bi}
v_fma_f32 v{dr}, -v{ai}, v{bi}, v{dr}
v_fmac_f32 v{di}, v{ai}, v{br}""")

def role_ln(k, kid):
    S = 904
    srd(k, 56, P(0), 0, ACT_BYTES)
    srd(k, 60, S_WS, WS_LNT, ACT_BYTES)
    k(f"""s_mul_i32 s5, s4, {32*896}
v_lshl_add_u32 v5, v2, 3, v4
v_mul_u32_u24 v6, 896, v5
v_lshl_add_u32 v6, v3, 3, v6
v_add_u32 v7, 3584, v6""")
    RAW = [list(range(10, 24)), list(range(24, 38))]
    for p in range(2):
        for i in range(7):
            k(f"buffer_load_dwordx2 v[{RAW[p][2*i]}:{RAW[p][2*i+1]}], v{6+p}, s[56:59], s5 offen offset:{128*i}")
    k(f"v_mul_u32_u24 v8, {S}, v5\nv_lshl_add_u32 v8, v3, 3, v8")
    X = list(range(40, 68)); T = list(range(68, 76))
    for p in range(2):
        k(f"s_waitcnt vmcnt({7 if p == 0 else 0})")
        for i in range(14): unpack(k, RAW[p][i], X[2*i], X[2*i+1])
        mb, rinv = ln_stats(k, X, T, dpp_sum16)
        ln_apply(k, X, mb, rinv, RAW[p])
        for i in range(7):
            k(f"ds_write_b64 v8, v[{RAW[p][2*i]}:{RAW[p][2*i+1]}] offset:{128*i + p*4*S}")
    k(f"""v_lshrrev_b32 v9, 2, v3
v_lshl_add_u32 v9, v4, 3, v9
v_mul_u32_u24 v9, {S}, v9
v_and_b32 v5, 3, v3
v_lshl_add_u32 v9, v5, 3, v9
v_lshl_add_u32 v9, v2, 5, v9
v_lshl_add_u32 v5, v2, 4, v3
v_lshlrev_b32 v5, 12, v5
v_lshl_add_u32 v5, v4, 4, v5
s_lshl_b32 s5, s4, 6
s_waitcnt lgkmcnt(0)
s_barrier""")
    for j in range(7):
        b = 10 + 4*j
        k(f"ds_read_b64_tr_b16 v[{b}:{b+1}], v9 offset:{128*j}")
        k(f"ds_read_b64_tr_b16 v[{b+2}:{b+3}], v9 offset:{128*j + 4*S}")
    for j in range(7):
        b = 10 + 4*j
        k(f"s_waitcnt lgkmcnt({12 - 2*j})")
        k(f"buffer_store_dwordx4 v[{b}:{b+3}], v5, s[60:63], s5 offen")
        if j < 6: k(f"s_add_u32 s5, s5, {64*4096}")
    stamp(k, 1); stamp(k, 2); stamp(k, 3); stamp_flush(k, kid, 4)
    k("s_endpgm")

def role_gemv(k, kid, is_mod):
    RB = 5376 if is_mod else 3584
    Lx = k.label("gx")
    if is_mod:
        srd(k, 56, P(15), 0, 448*5376)
        srd(k, 60, S_WS, WS_MOD, WS_MOD1 + 2688*4)
        srd(k, 64, P(14), 0, 896)
        k(f"""v_lshlrev_b32 v5, 1, v0
buffer_load_ushort v6, v5, s[64:67], 0 offen
buffer_load_ushort v7, v5, s[64:67], 0 offen offset:512""")
    else:
        srd(k, 56, P(12), 0, 448*3584)
        srd(k, 60, S_WS, WS_CS3, 1792*4)
    k(f"""v_lshl_add_u32 v8, v2, 2, v4
v_mul_u32_u24 v9, {RB}, v8
v_lshl_add_u32 v9, v3, 3, v9
s_lshl_b32 s5, s4, 7""")
    for i in range(28):
        k(f"buffer_load_dwordx2 v[{10+2*i}:{11+2*i}], v9, s[56:59], s5 offen")
        if i < 27: k(f"s_add_u32 s5, s5, {16*RB}")
    if is_mod:
        k("s_waitcnt vmcnt(28)")
        for v in (6, 7):
            k(f"""v_lshlrev_b32 v{v}, 16, v{v}
v_mul_f32 v5, {f2u(-LOG2E)}, v{v}
v_exp_f32 v5, v5
v_add_f32 v5, 1.0, v5
v_rcp_f32 v5, v5
v_mul_f32 v{v}, v{v}, v5""")
            rnd(k, v)
        k(f"""v_lshlrev_b32 v5, 2, v0
ds_write_b32 v5, v6
ds_write_b32 v5, v7 offset:1024
v_lshlrev_b32 v5, 2, v8
s_waitcnt lgkmcnt(0)
s_barrier""")
        for i in range(28): k(f"ds_read_b32 v{66+i}, v5 offset:{64*i}")
    k("v_mov_b32 v96, 0\nv_mov_b32 v97, 0\nv_mov_b32 v98, 0\nv_mov_b32 v99, 0\ns_waitcnt lgkmcnt(0)")
    for i in range(28):
        k(f"s_waitcnt vmcnt({27-i})")
        unpack(k, 10+2*i, 100, 101); unpack(k, 11+2*i, 102, 103)
        for c in range(4):
            k(f"v_fmac_f32 v{96+c}, v{100+c}, v{66+i}" if is_mod else f"v_add_f32 v{96+c}, v{96+c}, v{100+c}")
    k(f"""v_lshlrev_b32 v5, 8, v8
v_lshl_add_u32 v5, v3, 4, v5
ds_write_b128 v5, v[96:99] offset:2048
v_lshlrev_b32 v5, 2, v0
s_waitcnt lgkmcnt(0)
s_barrier
s_cmp_lg_u32 s7, 0
s_cbranch_scc1 {Lx}""")
    for i in range(16): k(f"ds_read_b32 v{10+i}, v5 offset:{2048 + 256*i}")
    k("s_waitcnt lgkmcnt(0)")
    for st in (8, 4, 2, 1):
        for i in range(st): k(f"v_add_f32 v{10+i}, v{10+i}, v{10+i+st}")
    k("s_lshl_b32 s5, s4, 8")
    if is_mod:
        rnd(k, 10); k("v_add_f32 v11, 1.0, v10"); rnd(k, 11)
        k(f"s_add_u32 s6, s5, {WS_MOD1 - WS_MOD}\nbuffer_store_dword v11, v5, s[60:63], s6 offen")
    k("buffer_store_dword v10, v5, s[60:63], s5 offen")
    stamp(k, 1); stamp(k, 2); stamp(k, 3); stamp_flush(k, kid, 4)
    k(f"{Lx}:\ns_endpgm")

def role_repack(k, kid, small):
    La, Ld = k.label("rp"), k.label("rp")
    if small:
        k(f"s_cmp_ge_u32 s4, 14\ns_cbranch_scc1 {La}")
        srd(k, 56, P(10), 0, 448*896)
        k(f"s_mov_b32 s8, {WS_PW1}\ns_branch {Ld}\n{La}:")
        srd(k, 56, P(11), 0, 448*896)
        k(f"s_sub_u32 s4, s4, 14\ns_mov_b32 s8, {WS_PW2}\n{Ld}:")
        k(f"s_mov_b32 s6, 896\ns_mul_i32 s5, s4, {32*896}\ns_mul_i32 s9, s4, 7168\ns_add_u32 s8, s8, s9\ns_mov_b32 s9, {14*7168}")
    else:
        k(f"s_cmp_ge_u32 s4, 56\ns_cbranch_scc1 {La}")
        srd(k, 56, P(13), 0, 1792*896)
        k(f"s_mov_b32 s6, 896\ns_mul_i32 s5, s4, {32*896}\ns_mul_i32 s8, s4, 7168\ns_add_u32 s8, s8, {WS_PW4}\ns_mov_b32 s9, {56*7168}\ns_branch {Ld}\n{La}:")
        srd(k, 56, P(12), 0, 448*3584)
        k(f"""s_sub_u32 s4, s4, 56
s_and_b32 s10, s4, 3
s_lshr_b32 s4, s4, 2
s_mov_b32 s6, 3584
s_mul_i32 s5, s4, {32*3584}
s_mul_i32 s11, s10, 896
s_add_u32 s5, s5, s11
s_mul_i32 s8, s4, 7168
s_mul_i32 s11, s10, {4*14*7168}
s_add_u32 s8, s8, s11
s_add_u32 s8, s8, {WS_PW3}
s_mov_b32 s9, {14*7168}
{Ld}:""")
    srd(k, 60, S_WS, 0, 30*MB)
    k(f"s_lshl_b32 s10, s7, 10")
    for j in range(7):
        k(f"""v_add_u32 v5, {256*j}, v0
v_mul_u32_u24 v6, 18725, v5
v_lshrrev_b32 v6, 20, v6
v_mul_u32_u24 v7, 56, v6
v_sub_u32 v7, v5, v7
v_mul_lo_u32 v6, v6, s6
v_lshl_add_u32 v6, v7, 4, v6
s_add_u32 m0, s10, {4096*j}
s_nop 0
buffer_load_dwordx4 v6, s[56:59], s5 offen lds""")
    k(f"""v_lshrrev_b32 v5, 2, v3
v_lshl_add_u32 v5, v4, 3, v5
v_mul_u32_u24 v5, 896, v5
v_and_b32 v6, 3, v3
v_lshl_add_u32 v5, v6, 3, v5
v_mul_u32_u24 v6, 224, v2
v_add_u32 v5, v5, v6
v_lshlrev_b32 v6, 4, v1
s_mul_i32 s9, s9, s7
s_add_u32 s8, s8, s9
s_waitcnt vmcnt(0)
s_barrier""")
    for nu in range(7):
        b = 10 + 4*nu
        k(f"ds_read_b64_tr_b16 v[{b}:{b+1}], v5 offset:{32*nu}")
        k(f"ds_read_b64_tr_b16 v[{b+2}:{b+3}], v5 offset:{32*nu + 4*896}")
    for nu in range(7):
        b = 10 + 4*nu
        k(f"s_waitcnt lgkmcnt({12 - 2*nu})")
        if nu == 4: k("s_add_u32 s8, s8, 4096")
        k(f"buffer_store_dwordx4 v[{b}:{b+3}], v6, s[60:63], s8 offen offset:{1024*(nu%4)}")
    stamp(k, 1); stamp(k, 2); stamp(k, 3); stamp_flush(k, kid, 4)
    k("s_endpgm")

def role_kgen(k, kid):
    WREG = 8704; FT = 4 * WREG
    k(f"""s_lshl_b32 s5, s4, 9
v_lshl_add_u32 v5, v0, 1, s5
s_and_b32 s6, s4, 0xfffffffe
s_lshl_b32 s6, s6, 1
s_waitcnt lgkmcnt(0)""")
    for i in range(6):
        k(f"global_load_ushort v{10+i}, v5, s[{P(1+i)}:{P(1+i)+1}]")
    k(f"""s_add_u32 s8, s{P(7)}, s6
s_addc_u32 s9, s{P(7)+1}, 0
s_load_dword s10, s[8:9], 0
v_mul_u32_u24 v6, {WREG}, v2
v_lshl_add_u32 v7, v1, 2, v6""")
    WB = list(range(100, 108))
    for i in range(8): k(f"v_add_u32 v{WB[i]}, {i*1088}, v7")
    VMASK = 160; VSEL = 161
    k(f"""v_mul_u32_u24 v8, 544, v3
v_add_u32 v8, v8, v6
v_lshl_add_u32 v8, v4, 4, v8
v_mov_b32 v{VMASK}, 0xffff0000
v_mov_b32 v{VSEL}, 0x07060302
s_waitcnt lgkmcnt(0)
s_and_b32 s11, s4, 1
s_lshl_b32 s11, s11, 4
s_lshr_b32 s10, s10, s11
s_lshl_b32 s10, s10, 16
v_mov_b32 v9, s10
v_mul_f32 v9, {f2u(LOG2E)}, v9
v_exp_f32 v9, v9""")
    rnd(k, 9)
    k("s_waitcnt vmcnt(0)")
    stamp(k, 1)
    for i in range(6): k(f"v_lshlrev_b32 v{10+i}, 16, v{10+i}")
    k("v_mul_f32 v10, v9, v10\nv_mul_f32 v11, v9, v11\nv_mul_f32 v12, v9, v12\nv_mul_f32 v13, v9, v13")
    W0 = (16, 17)
    cmul(k, 16, 17, 14, 15, 12, 13)
    def cexp(dr, di, m, t0, t1, conj=False):
        k(f"""v_mul_f32 v{t0}, {f2u(m*LOG2E)}, v10
v_mul_f32 v{t1}, {f2u((-m if conj else m)/(2*math.pi))}, v11
v_exp_f32 v{t0}, v{t0}
v_fract_f32 v{t1}, v{t1}
v_cos_f32 v{dr}, v{t1}
v_sin_f32 v{di}, v{t1}
v_mul_f32 v{dr}, v{dr}, v{t0}
v_mul_f32 v{di}, v{di}, v{t0}""")
    U = {u: (18 + 2*u, 19 + 2*u) for u in range(1, 8)}
    E8 = (34, 35); E16 = (36, 37); E128 = (38, 39); E256 = (40, 41)
    cexp(U[1][0], U[1][1], 1.0, 42, 43)
    cexp(E8[0], E8[1], 8.0, 44, 45, conj=True)
    cexp(E128[0], E128[1], 128.0, 46, 47)
    cnt = [0]
    TS = [(48, 49, 50, 51), (52, 53, 54, 55)]
    def emit_val(p, vr_, vi_):
        cnt[0] += 1
        h, a, b, lo = TS[cnt[0] % 2]
        k(f"""v_and_b32 v{a}, v{VMASK}, v{vr_}
v_and_b32 v{b}, v{VMASK}, v{vi_}
v_perm_b32 v{h}, v{vi_}, v{vr_}, v{VSEL}
v_sub_f32 v{a}, v{vr_}, v{a}
v_sub_f32 v{b}, v{vi_}, v{b}
v_cvt_pk_bf16_f32 v{lo}, v{a}, v{b}""")
        o = (p % 2) * 136
        k(f"ds_write2_b32 v{WB[p//2]}, v{h}, v{lo} offset0:{o} offset1:{o+68}")
    cmul(k, E16[0], E16[1], E8[0], E8[1], E8[0], E8[1])
    k("v_mov_b32 v48, 0x3f80\nv_mov_b32 v49, 0")
    k(f"ds_write2_b32 v{WB[0]}, v48, v49 offset0:0 offset1:68")
    emit_val(1, E8[0], E8[1]); emit_val(2, E16[0], E16[1])
    ev = E16; od = E8
    bufs = [(56, 57), (58, 59), (60, 61), (62, 63)]
    bi = 0
    for j in range(3, 16):
        src = od if j % 2 else ev
        d = bufs[bi % 4]; bi += 1
        cmul(k, d[0], d[1], src[0], src[1], E16[0], E16[1])
        emit_val(j, d[0], d[1])
        if j % 2: od = d
        else: ev = d
    for (u, a, b) in ((2, 1, 1), (3, 2, 1), (4, 2, 2), (5, 4, 1), (6, 4, 2), (7, 4, 3)):
        cmul(k, U[u][0], U[u][1], U[a][0], U[a][1], U[b][0], U[b][1])
    cmul(k, E256[0], E256[1], E128[0], E128[1], E128[0], E128[1])
    RF = 64
    k("s_waitcnt lgkmcnt(0)")
    for lo in range(2):
        for s in range(4):
            b = RF + 16*lo + 4*s
            k(f"ds_read_b128 v[{b}:{b+3}], v8 offset:{64*s + 272*lo}")
    LF = 108; ACC = 140
    for i in range(12): k(f"v_mov_b32 v{ACC+i}, 0")
    Wreg = {0: W0}
    wb = [(152, 153), (154, 155), (156, 157), (158, 159)]
    wi = [0]
    def getW(v):
        if v in Wreg: return Wreg[v]
        d = wb[wi[0] % 4]; wi[0] += 1
        if v == 1: cmul(k, d[0], d[1], W0[0], W0[1], E128[0], E128[1])
        else:
            s = getW(v-2)
            cmul(k, d[0], d[1], s[0], s[1], E256[0], E256[1])
        Wreg[v] = d
        return d
    tiles = [
        [(v, u) for v in (0, 1) for u in range(8)],
        [(v, u) for v in (2, 3) for u in (0, 2, 4, 6)] + [(v, u) for v in (4, 5, 6, 7) for u in (0, 4)],
        [(v, 0) for v in range(8, 17)],
    ]
    for ti, rows in enumerate(tiles):
        if ti == 0: k("s_waitcnt lgkmcnt(0)")
        for p, (v, u) in enumerate(rows):
            w = getW(v)
            if u == 0: emit_val(p, w[0], w[1])
            else:
                d = bufs[bi % 4]; bi += 1
                cmul(k, d[0], d[1], w[0], w[1], U[u][0], U[u][1])
                emit_val(p, d[0], d[1])
        k("s_waitcnt lgkmcnt(0)")
        for lo in range(2):
            for s in range(4):
                b = LF + 16*lo + 4*s
                k(f"ds_read_b128 v[{b}:{b+3}], v8 offset:{64*s + 272*lo}")
        a = ACC + 4*ti
        seq = [(0, s, 0, s) for s in range(4)] + [(0, s, 1, s) for s in range(4)] + [(1, s, 0, s) for s in range(4)]
        for n, (ll, s, rl, s2) in enumerate(seq):
            if n < 4: k(f"s_waitcnt lgkmcnt({7-n})")
            if n == 8: k("s_waitcnt lgkmcnt(0)")
            lb = LF + 16*ll + 4*s; rb = RF + 16*rl + 4*s2
            k(f"v_mfma_f32_16x16x32_bf16 v[{a}:{a+3}], v[{lb}:{lb+3}], v[{rb}:{rb+3}], v[{a}:{a+3}]")
    stamp(k, 2)
    k(f"""v_and_b32 v10, 1, v4
v_lshrrev_b32 v11, 1, v4
v_lshlrev_b32 v12, 4, v10
v_lshl_add_u32 v12, v11, 9, v12
v_lshl_add_u32 v12, v3, 5, v12
v_add_u32 v12, v12, v6
v_lshlrev_b32 v13, 8, v10
v_lshl_add_u32 v14, v3, 4, v13
v_add_u32 v14, 1024, v14
v_lshl_add_u32 v15, v3, 3, v13
v_add_u32 v15, 1536, v15
v_cmp_gt_u32 vcc, 2, v4
v_cndmask_b32 v14, v15, v14, vcc
v_mov_b32 v15, 128
v_cndmask_b32 v15, v15, 8, vcc
v_add_u32 v14, v14, v6
v_add_u32 v15, v15, v14
v_lshlrev_b32 v16, 8, v4
v_lshl_add_u32 v16, v3, 2, v16
v_add_u32 v16, v16, v6
ds_write_b128 v12, v[{ACC}:{ACC+3}]
ds_write_b64 v14, v[{ACC+4}:{ACC+5}]
ds_write_b64 v15, v[{ACC+6}:{ACC+7}]""")
    for r in range(4): k(f"ds_write_b32 v16, v{ACC+8+r} offset:{2048 + 64*r}")
    k(f"""v_lshlrev_b32 v17, 2, v0
v_lshlrev_b32 v18, 3, v0
v_cvt_f32_u32 v40, v18
s_mov_b32 s12, {(FT - 0x10A00) & 0xffffffff}
v_cmp_gt_u32 vcc, 16, v0
v_lshlrev_b32 v18, 5, v0""")
    for e in range(1, 8): k(f"v_add_f32 v{40+e}, {f2u(float(e))}, v40")
    for pz in range(4): k(f"v_cvt_pk_bf16_f32 v{50+pz}, v{40+2*pz}, v{41+2*pz}")
    for pz in range(4): k(f"v_and_b32 v{40+2*pz}, 0xffff, v{50+pz}\nv_lshrrev_b32 v{41+2*pz}, 16, v{50+pz}")
    for e in range(8):
        k(f"v_lshl_add_u32 v{40+e}, v{40+e}, 2, s12\nv_add_u32 v54, {FT + 4*e}, v18\nv_cndmask_b32 v{40+e}, v{40+e}, v54, vcc")
    k("s_waitcnt lgkmcnt(0)\ns_barrier")
    for t in range(3):
        for w in range(4): k(f"ds_read_b32 v{20+4*t+w}, v17 offset:{w*WREG + 1024*t}")
    k("s_waitcnt lgkmcnt(0)")
    for t in range(3):
        b = 20 + 4*t
        k(f"v_add_f32 v{b}, v{b}, v{b+1}\nv_add_f32 v{b+2}, v{b+2}, v{b+3}\nv_add_f32 v{b}, v{b}, v{b+2}")
        k(f"ds_write_b32 v17, v{b} offset:{FT + 1024*t}")
    srd(k, 56, S_WS, WS_KH, ACT_BYTES)
    srd(k, 60, S_WS, WS_KL, ACT_BYTES)
    k(f"s_lshl_b32 s5, s4, 12\nv_lshlrev_b32 v18, 4, v0\ns_waitcnt lgkmcnt(0)\ns_barrier")
    for e in range(8): k(f"ds_read_b32 v{60+e}, v{40+e}")
    k("s_waitcnt lgkmcnt(0)")
    for pz in range(4):
        a, b = 67 - 2*pz, 66 - 2*pz
        k(f"v_cvt_pk_bf16_f32 v{70+pz}, v{a}, v{b}")
    k("buffer_store_dwordx4 v[70:73], v18, s[56:59], s5 offen")
    if USE_KLO:
        for pz in range(4):
            a, b = 67 - 2*pz, 66 - 2*pz
            unpack(k, 70+pz, 80, 81)
            k(f"v_sub_f32 v{a}, v{a}, v80\nv_sub_f32 v{b}, v{b}, v81\nv_cvt_pk_bf16_f32 v{74+pz}, v{a}, v{b}")
        k("buffer_store_dwordx4 v[74:77], v18, s[60:63], s5 offen")
    stamp(k, 3); stamp_flush(k, kid, 4)
    k("s_endpgm")

K1_WGS = 448 + 64 + 42 + 28
def gen_k1():
    k = Kern("k1_kernel")
    k(f"s_cmp_ge_u32 s2, {K1_WGS}\ns_cbranch_scc1 k1_end")
    stamp(k, 0)
    load_kernargs(k); lane_ids(k)
    k(f"""s_getpc_b64 s[8:9]
k1_pc:
s_lshr_b32 s10, s2, 3
s_and_b32 s10, s10, 31
s_mul_i32 s10, s10, CODE_SLICE
s_sub_u32 s8, s8, k1_pc-k1_kernel
s_subb_u32 s9, s9, 0
v_lshl_add_u32 v5, v0, 4, s10
v_min_u32 v5, CODE_BYTES-16, v5
global_load_dwordx4 v[156:159], v5, s[8:9]
s_mov_b32 s4, s2
s_cmp_lt_u32 s2, 448
s_cbranch_scc1 k1_kgen
s_waitcnt lgkmcnt(0)
s_sub_u32 s4, s2, 554
s_cmp_ge_u32 s2, 554
s_cbranch_scc1 k1_rp
s_sub_u32 s4, s2, 512
s_cmp_ge_u32 s2, 512
s_cbranch_scc1 k1_mod
s_sub_u32 s4, s2, 448""")
    role_ln(k, 0)
    k("k1_mod:"); role_gemv(k, 0, True)
    k("k1_rp:"); role_repack(k, 0, True)
    k("k1_kgen:"); role_kgen(k, 0)
    k("k1_end:\ns_endpgm")
    return k, (K1_WGS, 256, 38912)

K2_CS = 4256; K2_KH = 8 * K2_CS; K2_KSZ = 4576; K2_RED = K2_CS; K2_LDS = K2_KH + 2 * K2_KSZ
K2_WGS = 112 + 28 + 448
def role_conv(k, kid):
    CS = K2_CS; KH = K2_KH; KSZ = K2_KSZ; RED = K2_RED
    k(f"""s_lshl_b32 s5, s4, 12
s_lshl_b32 s8, s4, 2
s_and_b32 s6, s4, 0xfffffffe
s_lshl_b32 s6, s6, 1
v_lshl_add_u32 v5, v0, 4, s5
v_subrev_u32 v6, 16, v5
s_waitcnt lgkmcnt(0)""")
    stamp(k, 1)
    srd(k, 56, S_WS, WS_LNT, ACT_BYTES)
    srd(k, 60, S_WS, WS_KH, ACT_BYTES)
    srd(k, 64, S_WS, WS_KL, ACT_BYTES)
    srd(k, 68, S_WS, WS_ZT, ACT_BYTES)
    k(f"""buffer_load_dwordx4 v[8:11], v6, s[56:59], 0 offen
buffer_load_dwordx4 v[12:15], v5, s[56:59], 0 offen
s_add_u32 s10, s52, s8
s_addc_u32 s11, s53, 0
s_lshl_b32 s8, s7, 10
s_add_u32 m0, s8, {KH + 480}
s_load_dword s12, s[10:11], {WS_MOD}
buffer_load_dwordx4 v5, s[60:63], 0 offen lds""")
    if USE_KLO:
        k(f"s_add_u32 m0, s8, {KH + 480 + KSZ}\ns_nop 0\nbuffer_load_dwordx4 v5, s[64:67], 0 offen lds")
    k(f"""s_load_dword s13, s[10:11], {WS_MOD1 + 448*4}
s_load_dword s14, s[10:11], {WS_MOD + 896*4}
s_add_u32 s10, s{P(8)}, s6
s_addc_u32 s11, s{P(8)+1}, 0
s_load_dword s15, s[10:11], 0
v_and_b32 v16, 31, v1
v_min_u32 v16, 29, v16
v_lshlrev_b32 v16, 4, v16
v_lshrrev_b32 v17, 5, v1
v_mul_u32_u24 v17, {KSZ}, v17
v_add_u32 v16, v16, v17
v_add_u32 v16, {KH}, v16
v_mul_u32_u24 v17, {CS}, v1
v_cmp_gt_u32 vcc, 8, v1
v_cndmask_b32 v17, 16, v17, vcc
v_and_b32 v18, 1, v2
v_cmp_eq_u32 vcc, 1, v18
v_cndmask_b32 v16, v16, v17, vcc
v_mov_b32 v20, 0
v_mov_b32 v21, 0
v_mov_b32 v22, 0
v_mov_b32 v23, 0
ds_write_b128 v16, v[20:23]
s_waitcnt lgkmcnt(0)
s_and_b32 s6, s4, 1
s_lshl_b32 s6, s6, 4
s_lshr_b32 s15, s15, s6
s_lshl_b32 s15, s15, 16
v_mov_b32 v16, s13
v_mov_b32 v45, s12
v_mov_b32 v62, s14
v_mov_b32 v63, s15
v_cmp_eq_u32 vcc, 0, v0
s_waitcnt vmcnt({2 if USE_KLO else 1})""")
    for i in range(8):
        unpack(k, 8+i, 42, 43)
        k("v_mul_f32 v42, v42, v16\nv_mul_f32 v43, v43, v16")
        rnd(k, 42); rnd(k, 43)
        k(f"v_add_f32 v42, v42, v45\nv_add_f32 v43, v43, v45\nv_cvt_pk_bf16_f32 v{24+i}, v42, v43")
        if i < 4: k(f"v_cndmask_b32 v{24+i}, v{24+i}, 0, vcc")
    for i in range(1, 7): k(f"v_mov_b32 v{33+i}, v{24+i}")
    for i in range(7): k(f"v_alignbyte_b32 v{46+i}, v{25+i}, v{24+i}, 2")
    for i in range(1, 7): k(f"v_mov_b32 v{53+i}, v{46+i}")
    k(f"v_lshlrev_b32 v17, 4, v0\nds_write_b128 v17, v[28:31] offset:32")
    srcs = {1: 46, 2: 34, 3: 54, 4: 26, 5: 48, 6: 36, 7: 56}
    for s in range(1, 8):
        b = srcs[s]
        k(f"ds_write_b128 v17, v[{b}:{b+3}] offset:{s*CS + 16}")
    k(f"""v_add_u32 v18, 1, v3
v_and_b32 v19, 7, v18
v_mul_u32_u24 v19, {CS}, v19
v_lshrrev_b32 v18, 3, v18
v_sub_u32 v18, v18, v4
v_add_u32 v18, 3, v18
v_lshl_add_u32 v19, v18, 4, v19
v_lshl_add_u32 v19, v2, 7, v19
v_lshlrev_b32 v18, 5, v3
v_lshl_add_u32 v18, v4, 4, v18
v_lshlrev_b32 v20, 7, v2
v_sub_u32 v18, v18, v20
v_add_u32 v18, {KH + 384}, v18""")
    ACC = 64; AF = 96; BH = 128; BL = 128
    for i in range(32): k(f"v_mov_b32 v{ACC+i}, 0")
    k("s_waitcnt vmcnt(0) lgkmcnt(0)\ns_barrier")
    stamp(k, 2)
    srd(k, 72, S_WS, WS_PW1, 1*MB)
    k(f"""s_lshr_b32 s18, s4, 3
s_cmp_ge_u32 s18, 28
s_cselect_b32 s19, {512*1024 - 28*14336}, 0
s_mul_i32 s18, s18, 14336
s_add_u32 s18, s18, s19""")
    for j in range(4):
        k(f"buffer_load_dwordx4 v[160:163], v17, s[72:75], s18 offen")
        if j < 3: k("s_add_u32 s18, s18, 4096")
    for rr in range(2):
        for m in range(8):
            k(f"ds_read_b128 v[{AF+4*m}:{AF+4*m+3}], v19 offset:{64*rr + 512*m}")
            k(f"ds_read_b128 v[{BH+4*m}:{BH+4*m+3}], v18 offset:{64*(1-rr) + 512*m}")
        for mx in range(8):
            k(f"s_waitcnt lgkmcnt({14 - 2*mx})" if mx < 7 else "s_waitcnt lgkmcnt(0)")
            for m in range(8):
                for mp in range(8):
                    if max(m, mp) == mx and m + mp <= 7:
                        a = ACC + 4*(m+mp)
                        k(f"v_mfma_f32_16x16x32_bf16 v[{a}:{a+3}], v[{AF+4*m}:{AF+4*m+3}], v[{BH+4*mp}:{BH+4*mp+3}], v[{a}:{a+3}]")
        if USE_KLO:
            for m in range(8):
                k(f"ds_read_b128 v[{BL+4*m}:{BL+4*m+3}], v18 offset:{64*(1-rr) + 512*m + KSZ}")
            for mp in range(8):
                k(f"s_waitcnt lgkmcnt({7-mp})")
                for m in range(8 - mp):
                    a = ACC + 4*(m+mp)
                    k(f"v_mfma_f32_16x16x32_bf16 v[{a}:{a+3}], v[{AF+4*m}:{AF+4*m+3}], v[{BL+4*mp}:{BL+4*mp+3}], v[{a}:{a+3}]")
    stamp(k, 3)
    k(f"""v_lshlrev_b32 v20, 4, v1
v_lshl_add_u32 v21, v2, 13, v20
v_lshl_add_u32 v20, v2, 11, v20
v_add_u32 v20, {RED}, v20
v_add_u32 v21, {RED}, v21
s_barrier""")
    for I in range(8): k(f"ds_write_b128 v21, v[{ACC+4*I}:{ACC+4*I+3}] offset:{1024*I}")
    k(f"""v_lshlrev_b32 v22, 5, v3
v_lshl_add_u32 v22, v4, 3, v22
v_lshl_add_u32 v22, v2, 10, v22
v_lshl_add_u32 v23, v2, 5, v3
v_mul_u32_u24 v23, 14336, v23
v_lshl_add_u32 v23, v4, 3, v23
s_lshl_b32 s16, s4, 5
s_add_u32 s17, s16, {16*14336}
s_waitcnt lgkmcnt(0)
s_barrier""")
    for ii in range(2):
        for w in range(4):
            b = 96 + 16*ii + 4*w
            k(f"ds_read_b128 v[{b}:{b+3}], v20 offset:{8192*w + 1024*ii}")
        k(f"ds_read_b64 v[{128+2*ii}:{129+2*ii}], v22 offset:{32 + 512*ii}")
    for ii in range(2):
        b = 96 + 16*ii
        k(f"s_waitcnt lgkmcnt({5 if ii == 0 else 0})")
        for r in range(4):
            k(f"v_add_f32 v{b+r}, v{b+r}, v{b+4+r}\nv_add_f32 v{b+8+r}, v{b+8+r}, v{b+12+r}\nv_add_f32 v{b+r}, v{b+r}, v{b+8+r}")
        unpack(k, 128+2*ii, b+4, b+5); unpack(k, 129+2*ii, b+6, b+7)
        for r in range(4): rnd(k, b+r)
        for r in range(4): k(f"v_mul_f32 v{b+4+r}, v{b+4+r}, v63")
        for r in range(4): rnd(k, b+4+r)
        for r in range(4): k(f"v_add_f32 v{b+r}, v{b+r}, v{b+4+r}")
        for r in range(4): rnd(k, b+r)
        for r in range(4): k(f"v_mul_f32 v{b+r}, v{b+r}, v62")
        pack(k, b+8, b, b+1); pack(k, b+9, b+2, b+3)
        k(f"buffer_store_dwordx2 v[{b+8}:{b+9}], v23, s[68:71], s{16+ii} offen")
    stamp_flush(k, kid, 4)
    k("s_endpgm")

def gen_k2():
    k = Kern("k2_kernel")
    k(f"s_cmp_ge_u32 s2, {K2_WGS}\ns_cbranch_scc1 k2_end")
    stamp(k, 0)
    load_kernargs(k); lane_ids(k)
    k(f"""s_sub_u32 s4, s2, 140
s_cmp_ge_u32 s2, 140
s_cbranch_scc1 k2_conv
s_waitcnt lgkmcnt(0)
s_sub_u32 s4, s2, 112
s_cmp_ge_u32 s2, 112
s_cbranch_scc1 k2_cs
s_mov_b32 s4, s2""")
    role_repack(k, 1, False)
    k("k2_cs:"); role_gemv(k, 1, False)
    k("k2_conv:"); role_conv(k, 1)
    k("k2_end:\ns_endpgm")
    return k, (K2_WGS, 256, K2_LDS)
```

```python
from g2 import *

def tile_ids32(k):
    k("""s_and_b32 s4, s2, 7
s_lshr_b32 s5, s2, 3
s_lshl_b32 s4, s4, 3
s_lshr_b32 s6, s5, 2
s_add_u32 s4, s4, s6
s_lshl_b32 s4, s4, 5
s_and_b32 s5, s5, 3
s_mul_i32 s6, s5, 112""")

def afrag_base64(k, de, do, t1):
    k(f"""v_lshrrev_b32 v{t1}, 1, v3
v_xor_b32 v{t1}, v{t1}, v4
v_lshlrev_b32 v{t1}, 4, v{t1}
v_lshl_add_u32 v{de}, v3, 7, v{t1}
v_xor_b32 v{do}, 64, v{de}""")

def l2_prefetch(k, srdP, slice_bytes, nloads, vtid16, sT, VD):
    k(f"s_lshr_b32 s{sT}, s2, 3\ns_mul_i32 s{sT}, s{sT}, {slice_bytes}")
    for j in range(nloads):
        k(f"buffer_load_dwordx4 v[{VD}:{VD+3}], v{vtid16}, s[{srdP}:{srdP+3}], s{sT} offen")
        if j < nloads-1: k(f"s_add_u32 s{sT}, s{sT}, 8192")

def capture(k, fn):
    save = k.L; k.L = []
    fn()
    got = k.L; k.L = save
    return got

def interleave(k, lines, bg, start=0):
    n = len(lines) - start
    pos = {}
    for j, f in enumerate(bg):
        pos.setdefault(start + (j * n) // max(1, len(bg)), []).append(f)
    for i, ln in enumerate(lines):
        for f in pos.get(i, []): f()
        k.L.append(ln)

def mf(k, a, w, b):
    k(f"v_mfma_f32_16x16x32_bf16 v[{a}:{a+3}], v[{w}:{w+3}], v[{b}:{b+3}], v[{a}:{a+3}]")

K3_AZ = 0; K3_Z2 = 16384; K3_LDS = 16384 + 16*904 + 64
def gen_k3():
    k = Kern("k3_kernel"); vm = VM(k)
    Lend = "k3_end"
    k(f"s_cmp_ge_u32 s2, 256\ns_cbranch_scc1 {Lend}")
    stamp(k, 0)
    k("s_load_dwordx2 s[52:53], s[0:1], 144\ns_load_dwordx2 s[16:17], s[0:1], 0")
    lane_ids(k)
    k(f"""s_and_b32 s4, s2, 7
s_lshr_b32 s5, s2, 3
s_lshl_b32 s4, s4, 4
s_lshr_b32 s6, s5, 1
s_add_u32 s4, s4, s6
s_and_b32 s5, s5, 1
s_mul_i32 s8, s4, 14336
s_lshl_b32 s4, s4, 4
s_mul_i32 s9, s5, 448
s_mul_i32 s13, s5, {2*14*7168}
v_lshlrev_b32 v6, 4, v0
v_lshrrev_b32 v5, 5, v0
v_and_b32 v9, 31, v0
v_mul_u32_u24 v8, 896, v5
v_lshl_add_u32 v8, v9, 2, v8
v_lshlrev_b32 v7, 3, v9
s_lshl_b32 s11, s7, 10
v_mov_b32 v10, {OOB}
v_add_u32 v11, 8192, v6
v_cmp_lt_u32 vcc, 5, v2
v_cndmask_b32 v11, v11, v10, vcc
s_waitcnt lgkmcnt(0)""")
    stamp(k, 1)
    srd(k, 56, S_WS, WS_ZT, ACT_BYTES)
    srd(k, 60, P(0), 0, ACT_BYTES)
    srd(k, 64, S_WS, WS_PW1, 4*14*7168)
    srd(k, 68, S_WS, 0, WS_MOD1 + 2688*4)
    srd(k, 76, S_WS, WS_PW3, 16*14*7168)
    k(f"s_add_u32 m0, s11, {K3_AZ}\ns_nop 0")
    vm.op("Z", "buffer_load_dwordx4 v6, s[56:59], s8 offen lds")
    k(f"s_add_u32 m0, s11, {K3_AZ + 8192}\ns_nop 0")
    vm.op("Z", "buffer_load_dwordx4 v11, s[56:59], s8 offen lds")
    RX = 12; C1 = 20; SB = 34; WR = 100
    for i in range(7):
        vm.op("X", f"buffer_load_dword v{RX+i}, v8, s[60:63], s8 offen offset:{128*i}")
    k(f"s_mov_b32 s11, {WS_MOD1 + 4*448*4}\ns_mov_b32 s12, {WS_MOD + 3*448*4}")
    for i in range(7):
        vm.op("P", f"buffer_load_dwordx2 v[{C1+2*i}:{C1+2*i+1}], v7, s[68:71], s11 offen offset:{256*i}")
        vm.op("P", f"buffer_load_dwordx2 v[{SB+2*i}:{SB+2*i+1}], v7, s[68:71], s12 offen offset:{256*i}")
    k(f"""v_lshl_add_u32 v48, v2, 2, v4
v_lshrrev_b32 v49, 2, v3
v_lshl_add_u32 v49, v48, 2, v49
v_lshlrev_b32 v49, 5, v49
v_and_b32 v50, 3, v3
v_lshl_add_u32 v49, v50, 3, v49
v_mul_u32_u24 v50, 904, v3
v_lshl_add_u32 v50, v48, 3, v50
v_add_u32 v50, {K3_Z2}, v50
v_mul_u32_u24 v51, 904, v5
v_lshl_add_u32 v51, v9, 2, v51
v_add_u32 v51, {K3_Z2}, v51
v_lshrrev_b32 v52, 1, v5
v_lshrrev_b32 v53, 2, v9
v_xor_b32 v52, v52, v53
v_lshlrev_b32 v52, 4, v52
v_lshl_add_u32 v52, v5, 7, v52
v_and_b32 v53, 3, v9
v_lshl_add_u32 v52, v53, 2, v52""")
    vm.wait("Z"); k("s_barrier")
    stamp(k, 2)
    RZ = 54
    L3 = k.label("r3"); L3b = k.label("r3")
    for i in range(3):
        k(f"ds_read_b64_tr_b16 v[{RZ+2*i}:{RZ+2*i+1}], v49 offset:{K3_AZ + 4096*i}")
    k(f"s_cmp_gt_u32 s7, 3\ns_cbranch_scc1 {L3}")
    k(f"ds_read_b64_tr_b16 v[{RZ+6}:{RZ+7}], v49 offset:{K3_AZ + 4096*3}\ns_waitcnt lgkmcnt(0)\nds_write_b64 v50, v[{RZ+6}:{RZ+7}] offset:768")
    k(f"{L3}:\ns_waitcnt lgkmcnt(0)")
    for i in range(3):
        k(f"ds_write_b64 v50, v[{RZ+2*i}:{RZ+2*i+1}] offset:{256*i}")
    k("s_waitcnt lgkmcnt(0)\ns_barrier")
    for i in range(7):
        k(f"ds_read_b32 v{RZ+i}, v51 offset:{128*i}")
    X = list(range(62, 76)); T = list(range(76, 84)); PX1 = list(range(84, 91)); PH2 = list(range(91, 98))
    PA = list(range(RX, RX+7))
    k(f"s_add_u32 s14, s13, {14*7168}\ns_lshr_b32 s15, s2, 3\ns_mul_i32 s15, s15, 50176")
    vm.wait("P"); k("s_waitcnt lgkmcnt(0)")
    def chain():
        for i in range(7):
            a, b = X[2*i], X[2*i+1]
            unpack(k, RX+i, a, b); unpack(k, RZ+i, T[0], T[1])
            k(f"v_add_f32 v{a}, v{a}, v{T[0]}\nv_add_f32 v{b}, v{b}, v{T[1]}")
            pack(k, PX1[i], a, b)
        for x in X: rnd(k, x)
        mb, rinv = ln_stats(k, X, T, sum32)
        ln_apply(k, X, mb, rinv)
        for i, x in enumerate(X): k(f"v_mul_f32 v{x}, v{x}, v{C1+i}")
        for x in X: rnd(k, x)
        for i, x in enumerate(X): k(f"v_add_f32 v{x}, v{x}, v{SB+i}")
        for i in range(7): pack(k, PH2[i], X[2*i], X[2*i+1])
        for x in X: rnd(k, x)
        mb, rinv = ln_stats(k, X, T, sum32)
        ln_apply(k, X, mb, rinv, PA)
        for i in range(7): k(f"ds_write_b32 v52, v{PA[i]} offset:{K3_AZ + 2048*i}")
    lines = capture(k, chain)
    bg = []
    for s in range(14):
        def f(s=s):
            vm.op(f"W{s}", f"buffer_load_dwordx4 v[{WR+8*s}:{WR+8*s+3}], v6, s[64:67], s13 offen")
            vm.op(f"W{s}", f"buffer_load_dwordx4 v[{WR+8*s+4}:{WR+8*s+7}], v6, s[64:67], s14 offen")
            k("s_add_u32 s13, s13, 7168\ns_add_u32 s14, s14, 7168")
        bg.append(f)
    for j in range(7 if PF3 == "k3" else 0):
        def f():
            vm.op("PF", f"buffer_load_dwordx4 v[212:215], v6, s[76:79], s15 offen")
            k("s_add_u32 s15, s15, 8192")
        bg.append(f)
    interleave(k, lines, bg)
    afrag_base64(k, 48, 49, 50)
    ACC = 20; BUF = 28
    for i in range(8): k(f"v_mov_b32 v{ACC+i}, 0")
    srd(k, 72, S_WS, WS_G, ACT_BYTES)
    stamp(k, 3)
    k("s_waitcnt lgkmcnt(0)\ns_barrier")
    stamp(k, 4)
    Lst = k.label("st")
    k(f"s_cmp_eq_u32 s7, 7\ns_cbranch_scc1 {Lst}")
    D = 5
    def rd(s):
        b = BUF + 4 * (s % D)
        k(f"ds_read_b128 v[{b}:{b+3}], v{49 if s & 1 else 48} offset:{K3_AZ + 2048*(s>>1)}")
    for s in range(D): rd(s)
    for s in range(14):
        b = BUF + 4 * (s % D)
        k(f"s_waitcnt vmcnt({vm.cnt(f'W{s}')}) lgkmcnt({min(D, 14 - s) - 1})")
        mf(k, ACC, WR+8*s, b); mf(k, ACC+4, WR+8*s+4, b)
        if s + D < 14: rd(s + D)
    stamp(k, 5)
    k(f"""v_mov_b32 v48, {f2u(GC0)}
v_mov_b32 v49, {f2u(GC1)}
v_add_u32 v50, s4, v3
v_mul_u32_u24 v50, 896, v50
v_lshl_add_u32 v50, v4, 3, v50
v_lshl_add_u32 v50, v2, 5, v50""")
    xs = list(range(ACC, ACC+8))
    for x in xs: rnd(k, x)
    gelu(k, xs, list(range(28, 36)), 48, 49)
    for c in range(2):
        a = ACC + 4*c
        pack(k, 36+2*c, a, a+1); pack(k, 37+2*c, a+2, a+3)
        k(f"buffer_store_dwordx2 v[{36+2*c}:{37+2*c}], v50, s[72:75], s9 offen offset:{224*c}")
    stamp_flush(k, 2, 6)
    k(f"{Lst}:")
    L1 = k.label("c1"); L2 = k.label("c2")
    k(f"s_cmp_eq_u32 s5, 1\ns_cbranch_scc1 {L1}")
    srd(k, 72, S_WS, WS_X1, ACT_BYTES)
    for i in range(7): k(f"buffer_store_dword v{PX1[i]}, v8, s[72:75], s8 offen offset:{128*i}")
    k(f"s_branch {L2}\n{L1}:")
    srd(k, 72, S_WS, WS_H2, ACT_BYTES)
    for i in range(7): k(f"buffer_store_dword v{PH2[i]}, v8, s[72:75], s8 offen offset:{128*i}")
    k(f"{L2}:")
    k(f"{Lend}:\ns_endpgm")
    return k, (256, 512, K3_LDS)

K4_A = 0; K4_ST = 32768; K4_LDS = 34816
def gen_k4():
    k = Kern("k4_kernel"); vm = VM(k)
    Lend = "k4_end"
    k(f"s_cmp_ge_u32 s2, 256\ns_cbranch_scc1 {Lend}")
    stamp(k, 0)
    k("s_load_dwordx2 s[52:53], s[0:1], 144")
    lane_ids(k); tile_ids32(k)
    k(f"""s_lshl_b32 s9, s6, 1
v_lshlrev_b32 v7, 4, v0
s_mul_i32 s13, s5, {14*7168}
v_and_b32 v5, 3, v2
v_lshrrev_b32 v6, 3, v1
v_lshl_add_u32 v5, v5, 3, v6
v_lshrrev_b32 v6, 1, v5
v_and_b32 v6, 7, v6
v_and_b32 v8, 7, v1
v_xor_b32 v6, v6, v8
v_lshrrev_b32 v8, 2, v2
v_lshl_add_u32 v6, v8, 3, v6
v_add_u32 v5, s4, v5""")
    for j in range(4):
        d = 10 + j
        k(f"""v_add_u32 v8, {16*j}, v6
v_mul_u32_u24 v9, 0x12493, v8
v_lshrrev_b32 v9, 20, v9
v_lshrrev_b32 v14, 1, v9
v_add_u32 v14, 1, v14
v_and_b32 v9, 1, v9
v_lshlrev_b32 v9, 1, v9
v_subrev_u32 v9, 1, v9
v_mul_i32_i24 v9, v9, v14
v_add_u32 v9, v5, v9
v_mul_i32_i24 v{d}, 896, v9
v_lshl_add_u32 v{d}, v8, 4, v{d}""")
    k(f"""v_mov_b32 v8, {OOB}
v_cmp_lt_u32 vcc, 3, v2
v_cndmask_b32 v13, v13, v8, vcc
v_add_u32 v15, s4, v3
v_mul_u32_u24 v15, 896, v15
v_lshl_add_u32 v15, v4, 3, v15
v_lshl_add_u32 v15, v2, 5, v15
s_waitcnt lgkmcnt(0)""")
    stamp(k, 1)
    srd(k, 56, S_WS, WS_G, ACT_BYTES)
    srd(k, 60, S_WS, WS_H2, ACT_BYTES)
    srd(k, 64, S_WS, WS_PW2, 4*14*7168)
    srd(k, 68, S_WS, WS_XP, ACT_BYTES)
    srd(k, 72, S_WS, WS_ST, 65536)
    k(f"s_lshl_b32 s11, s7, 10")
    for j in range(4):
        k(f"s_add_u32 m0, s11, {K4_A + 8192*j}\ns_nop 0")
        vm.op("A", f"buffer_load_dwordx4 v{10+j}, s[56:59], 0 offen lds")
    L7 = k.label("w7")
    k(f"s_cmp_eq_u32 s7, 7\ns_cbranch_scc1 {L7}")
    WR = 88
    for s in range(14):
        vm.op(f"W{s}", f"buffer_load_dwordx4 v[{WR+4*s}:{WR+4*s+3}], v7, s[64:67], s13 offen")
        if s < 13: k("s_add_u32 s13, s13, 7168")
    k(f"s_add_u32 s10, s9, {16*896}")
    vm.op("H", f"buffer_load_dwordx2 v[16:17], v15, s[60:63], s9 offen")
    vm.op("H", f"buffer_load_dwordx2 v[18:19], v15, s[60:63], s10 offen")
    afrag_base64(k, 81, 82, 83)
    ACC = 24; BUF = 32
    for i in range(8): k(f"v_mov_b32 v{ACC+i}, 0")
    vm.wait("A"); k("s_barrier")
    stamp(k, 2)
    D = 6
    def rd(s):
        b = BUF + 8 * (s % D); va = 82 if s & 1 else 81
        k(f"ds_read_b128 v[{b}:{b+3}], v{va} offset:{4096*(s>>1)}\nds_read_b128 v[{b+4}:{b+7}], v{va} offset:{4096*(s>>1) + 2048}")
    for s in range(D): rd(s)
    for s in range(14):
        b = BUF + 8 * (s % D)
        k(f"s_waitcnt vmcnt({vm.cnt(f'W{s}')}) lgkmcnt({2 * (min(D, 14 - s) - 1)})")
        mf(k, ACC, WR+4*s, b); mf(k, ACC+4, WR+4*s, b+4)
        if s + D < 14: rd(s + D)
    stamp(k, 3)
    k(f"""v_mul_u32_u24 v84, 56, v3
v_lshl_add_u32 v84, v2, 3, v84
v_add_u32 v84, {K4_ST}, v84
s_waitcnt vmcnt(0)""")
    for mt in range(2):
        a = ACC + 4*mt
        for r in range(4): rnd(k, a+r)
        unpack(k, 16+2*mt, 42, 43); unpack(k, 17+2*mt, 44, 45)
        for r in range(4): k(f"v_add_f32 v{a+r}, v{a+r}, v{42+r}")
        pack(k, 46+2*mt, a, a+1); pack(k, 47+2*mt, a+2, a+3)
        k(f"buffer_store_dwordx2 v[{46+2*mt}:{47+2*mt}], v15, s[68:71], s{9+mt} offen")
        for r in range(4): rnd(k, a+r)
        k(f"v_add_f32 v50, v{a}, v{a+1}\nv_add_f32 v51, v{a+2}, v{a+3}\nv_add_f32 v50, v50, v51")
        allred4(k, 50, 52)
        k(f"v_mul_f32 v50, {f2u(1.0/16)}, v50")
        for r in range(4): k(f"v_sub_f32 v{42+r}, v{a+r}, v50")
        k("v_mul_f32 v51, v42, v42\nv_fmac_f32 v51, v43, v43\nv_fmac_f32 v51, v44, v44\nv_fmac_f32 v51, v45, v45")
        allred4(k, 51, 52)
        k(f"ds_write_b64 v84, v[50:51] offset:{16*56*mt}")
    k(f"s_waitcnt lgkmcnt(0)\ns_barrier")
    stamp_flush(k, 3, 4)
    k("s_endpgm")
    k(f"{L7}:")
    k(f"""s_waitcnt vmcnt(0)
s_barrier""")
    if PF3 == "k4":
        srd(k, 76, S_WS, WS_PW3, 16*14*7168)
        k(f"s_lshr_b32 s14, s2, 3\ns_mul_i32 s14, s14, 50176\nv_lshlrev_b32 v12, 4, v1")
        for j in range(49):
            k(f"buffer_load_dwordx4 v[28:31], v12, s[76:79], s14 offen offset:{1024*(j%4)}")
            if j % 4 == 3: k("s_add_u32 s14, s14, 4096")
    k(f"""v_and_b32 v5, 31, v1
v_mul_u32_u24 v6, 56, v5
v_add_u32 v6, {K4_ST}, v6
v_add_u32 v7, s4, v5
v_lshlrev_b32 v7, 5, v7
s_lshl_b32 s10, s5, 3
s_barrier""")
    for w in range(7): k(f"ds_read_b64 v[{10+2*w}:{11+2*w}], v6 offset:{8*w}")
    k("s_waitcnt lgkmcnt(0)")
    k("v_add_f32 v24, v10, v12\nv_add_f32 v25, v14, v16\nv_add_f32 v26, v18, v20\nv_add_f32 v24, v24, v22\nv_add_f32 v25, v25, v26\nv_add_f32 v24, v24, v25")
    k(f"v_mul_f32 v24, {f2u(1.0/7)}, v24")
    k("v_add_f32 v25, v11, v13\nv_add_f32 v26, v15, v17\nv_add_f32 v27, v19, v21\nv_add_f32 v25, v25, v23\nv_add_f32 v26, v26, v27\nv_add_f32 v25, v25, v26\nv_mov_b32 v26, 0")
    for w in range(7): k(f"v_sub_f32 v27, v{10+2*w}, v24\nv_fmac_f32 v26, v27, v27")
    k(f"v_fmac_f32 v25, {f2u(16.0)}, v26")
    k("buffer_store_dwordx2 v[24:25], v7, s[72:75], s10 offen")
    k(f"{Lend}:\ns_endpgm")
    return k, (256, 512, K4_LDS)

K5_STAT = 114688; K5_LDS = K5_STAT + 1024
def gen_k5():
    k = Kern("k5_kernel"); vm = VM(k)
    Lend = "k5_end"
    k(f"s_cmp_ge_u32 s2, 256\ns_cbranch_scc1 {Lend}")
    stamp(k, 0)
    k("s_load_dwordx2 s[52:53], s[0:1], 144")
    lane_ids(k)
    k(f"""s_and_b32 s4, s2, 7
s_lshr_b32 s5, s2, 3
s_lshl_b32 s4, s4, 1
s_lshr_b32 s6, s5, 4
s_add_u32 s4, s4, s6
s_lshl_b32 s4, s4, 7
s_and_b32 s5, s5, 15
s_mul_i32 s6, s5, 112
s_lshl_b32 s9, s6, 1
s_mul_i32 s13, s5, {14*7168}
v_lshrrev_b32 v5, 3, v1
v_lshl_add_u32 v5, v2, 3, v5
v_lshrrev_b32 v6, 1, v5
v_and_b32 v6, 7, v6
v_and_b32 v7, 7, v1
v_xor_b32 v6, v6, v7
v_add_u32 v5, s4, v5
v_mul_u32_u24 v10, 896, v5
v_lshl_add_u32 v10, v6, 4, v10
v_add_u32 v11, {64*896}, v10
v_lshlrev_b32 v12, 4, v0
v_lshlrev_b32 v7, 4, v4
v_lshl_add_u32 v7, v2, 6, v7
s_lshl_b32 s10, s6, 2
s_lshl_b32 s76, s7, 10
s_waitcnt lgkmcnt(0)""")
    stamp(k, 1)
    srd(k, 56, S_WS, WS_XP, ACT_BYTES)
    srd(k, 60, S_WS, WS_PW3, 16*14*7168)
    srd(k, 64, S_WS, WS_ST, 65536)
    srd(k, 68, S_WS, WS_CS3, 1792*4)
    srd(k, 72, S_WS, WS_H3, 2048*3584)
    srd(k, 84, S_WS, WS_PW4, 4*56*7168)
    def issueA(vmx, c):
        k(f"s_add_u32 m0, s76, {16384*c}\ns_mov_b32 s79, {128*c}")
        vmx.op(f"A{c}", "buffer_load_dwordx4 v10, s[56:59], s79 offen lds")
        k(f"s_add_u32 m0, s76, {16384*c + 8192}\ns_nop 0")
        vmx.op(f"A{c}", "buffer_load_dwordx4 v11, s[56:59], s79 offen lds")
    L7 = k.label("w7"); Lpf = k.label("pf")
    k(f"s_cmp_eq_u32 s7, 7\ns_cbranch_scc1 {L7}")
    WR = 16; ACC = 72; BUF = 104; CSR = 152
    def issueW(s):
        vm.op(f"W{s}", f"buffer_load_dwordx4 v[{WR+4*s}:{WR+4*s+3}], v12, s[60:63], s13 offen")
        k("s_add_u32 s13, s13, 7168")
    issueA(vm, 0); issueW(0); issueW(1); issueA(vm, 1); issueW(2); issueW(3); issueA(vm, 2)
    afrag_base64(k, 13, 14, 15)
    k(f"v_add_u32 v8, 65536, v13\nv_add_u32 v9, 65536, v14")
    for i in range(32): k(f"v_mov_b32 v{ACC+i}, 0")
    D = 12; N = 112
    stages = {0: 0, 16: 1, 32: 2, 48: 3, 64: 4, 80: 5, 96: 6}
    sched = {}
    for c in range(3, 7): sched.setdefault(16*(c-3) + 2, []).append(lambda c=c: issueA(vm, c))
    for s_ in range(4, 14): sched.setdefault(8*(s_-4) + 5, []).append(lambda s_=s_: issueW(s_))
    sched.setdefault(90, []).append(lambda: vm.op("CS", f"buffer_load_dwordx4 v[{CSR}:{CSR+3}], v7, s[68:71], s10 offen"))
    def rd(i):
        s, mt = divmod(i, 8)
        if i in stages:
            vm.wait(f"A{stages[i]}"); k("s_barrier")
            if i == 0: stamp(k, 2)
        c = s >> 1
        off = 16384 * c + 2048 * mt
        va = (14 if s & 1 else 13) if c < 4 else (9 if s & 1 else 8)
        if c >= 4: off -= 65536
        b = BUF + 4 * (i % D)
        k(f"ds_read_b128 v[{b}:{b+3}], v{va} offset:{off}")
    for i in range(D): rd(i)
    for i in range(N):
        s, mt = divmod(i, 8)
        b = BUF + 4 * (i % D)
        w = f"vmcnt({vm.cnt(f'W{s}')}) " if mt == 0 else ""
        k(f"s_waitcnt {w}lgkmcnt({min(D, N - i) - 1})")
        mf(k, ACC + 4*mt, WR + 4*s, b)
        for f in sched.get(i, []): f()
        if i + D < N: rd(i + D)
    stamp(k, 3)
    k(f"""v_mov_b32 v13, {f2u(GC0)}
v_mov_b32 v14, {f2u(GC1)}
v_add_u32 v15, s4, v3
v_mul_u32_u24 v15, 3584, v15
v_lshl_add_u32 v15, v2, 5, v15
v_lshl_add_u32 v15, v4, 3, v15
v_lshlrev_b32 v8, 3, v3
v_add_u32 v8, {K5_STAT}, v8
s_barrier""")
    for mt in range(8): k(f"ds_read_b64 v[{16+2*mt}:{17+2*mt}], v8 offset:{128*mt}")
    k("s_waitcnt vmcnt(0) lgkmcnt(0)")
    for h in range(4):
        xs = list(range(ACC + 8*h, ACC + 8*h + 8))
        for j, x in enumerate(xs):
            mt = 2*h + j // 4
            k(f"v_fma_f32 v{x}, -v{16+2*mt}, v{CSR + j % 4}, v{x}")
        for j, x in enumerate(xs):
            mt = 2*h + j // 4
            k(f"v_mul_f32 v{x}, v{x}, v{17+2*mt}")
        for x in xs: rnd(k, x)
        gelu(k, xs, list(range(32, 40)), 13, 14)
        for q in range(2):
            a = ACC + 8*h + 4*q; p = 40 + 4*(h % 2) + 2*q
            pack(k, p, a, a+1); pack(k, p+1, a+2, a+3)
            k(f"buffer_store_dwordx2 v[{p}:{p+1}], v15, s[72:75], s9 offen {H3MOD}")
            k(f"s_add_u32 s9, s9, {16*3584}")
    stamp_flush(k, 4, 4)
    k("s_endpgm")
    k(f"{L7}:")
    v7m = VM(k)
    k(f"v_add_u32 v5, s4, v1\nv_lshlrev_b32 v5, 5, v5")
    for t in range(2):
        v7m.op("S", f"buffer_load_dwordx4 v[{16+8*t}:{19+8*t}], v5, s[64:67], 0 offen offset:{2048*t}")
        v7m.op("S", f"buffer_load_dwordx4 v[{20+8*t}:{23+8*t}], v5, s[64:67], 0 offen offset:{2048*t+16}")
    for c in range(7): issueA(v7m, c)
    v7m.wait("S")
    for t in range(2):
        b = 16 + 8*t
        k(f"""v_add_f32 v50, v{b}, v{b+2}
v_add_f32 v51, v{b+4}, v{b+6}
v_add_f32 v50, v50, v51
v_mul_f32 v50, 0.25, v50
v_add_f32 v51, v{b+1}, v{b+3}
v_add_f32 v52, v{b+5}, v{b+7}
v_add_f32 v51, v51, v52
v_sub_f32 v52, v{b}, v50
v_mul_f32 v53, v52, v52
v_sub_f32 v52, v{b+2}, v50
v_fmac_f32 v53, v52, v52
v_sub_f32 v52, v{b+4}, v50
v_fmac_f32 v53, v52, v52
v_sub_f32 v52, v{b+6}, v50
v_fmac_f32 v53, v52, v52
v_fmac_f32 v51, {f2u(112.0)}, v53
v_mul_f32 v51, {f2u(1.0/448)}, v51""")
        den_from_var(k, 51); rnd(k, 50)
        k(f"v_lshlrev_b32 v6, 3, v1\nv_add_u32 v6, {K5_STAT}, v6\nds_write_b64 v6, v[50:51] offset:{512*t}")
    k(f"s_lshr_b32 s14, s2, 3\ns_mul_i32 s14, s14, 50176\nv_lshlrev_b32 v12, 4, v1")
    for c in range(7):
        v7m.wait(f"A{c}"); k("s_waitcnt lgkmcnt(0)\ns_barrier")
        for j in range(7 if PF4 == "k5" else 0):
            v7m.op("PF", f"buffer_load_dwordx4 v[28:31], v12, s[84:87], s14 offen")
            k("s_add_u32 s14, s14, 1024")
    k("s_barrier")
    k(f"{Lend}:\ns_endpgm")
    return k, (256, 512, K5_LDS)

K6_LDS = 114688
def gen_k6():
    k = Kern("k6_kernel"); vm = VM(k)
    Lend = "k6_end"
    k(f"s_cmp_ge_u32 s2, 256\ns_cbranch_scc1 {Lend}")
    stamp(k, 0)
    k("s_load_dwordx2 s[52:53], s[0:1], 144\ns_load_dwordx2 s[48:49], s[0:1], 128")
    lane_ids(k); tile_ids32(k)
    k(f"""s_lshl_b32 s9, s6, 1
v_lshl_add_u32 v5, v2, 2, v4
v_and_b32 v6, 15, v5
v_xor_b32 v6, v6, v3
v_add_u32 v5, s4, v5
v_mul_u32_u24 v10, 3584, v5
v_lshl_add_u32 v10, v6, 4, v10
v_lshlrev_b32 v11, 4, v0
v_add_u32 v15, s4, v3
v_mul_u32_u24 v15, 896, v15
v_lshl_add_u32 v15, v4, 3, v15
v_lshl_add_u32 v15, v2, 5, v15
v_lshlrev_b32 v7, 4, v4
v_lshl_add_u32 v7, v2, 6, v7
s_lshl_b32 s12, s6, 2
s_add_u32 s12, s12, {WS_MOD + 5*448*4}
s_add_u32 s10, s9, {16*896}
s_mul_i32 s13, s5, {56*7168}
s_lshl_b32 s76, s7, 10
s_waitcnt lgkmcnt(0)""")
    stamp(k, 1)
    srd(k, 56, S_WS, WS_H3, 2048*3584)
    srd(k, 60, S_WS, WS_PW4, 4*56*7168)
    srd(k, 64, S_WS, WS_XP, ACT_BYTES)
    srd(k, 68, S_WS, WS_X1, ACT_BYTES)
    srd(k, 72, S_WS, 0, WS_MOD + 2688*4)
    srd(k, 84, S_OUT, 0, ACT_BYTES)
    def issueA(vmx, c):
        k(f"s_add_u32 m0, s76, {8192*c}\ns_mov_b32 s15, {256*c}")
        vmx.op(f"A{c}", "buffer_load_dwordx4 v10, s[56:59], s15 offen lds")
    L7 = k.label("w7")
    k(f"s_cmp_eq_u32 s7, 7\ns_cbranch_scc1 {L7}")
    ACC = 32; BUF = 40; WR = 88; AH = K6DW; DW = AH + 4; D = 12
    def issueW(s):
        b = WR + 4*(s % DW)
        vm.op(f"W{s}", f"buffer_load_dwordx4 v[{b}:{b+3}], v11, s[60:63], s13 offen")
        k("s_add_u32 s13, s13, 7168")
    issueA(vm, 0); issueW(0); issueW(1); issueA(vm, 1); issueW(2); issueW(3); issueA(vm, 2)
    for s in range(4, 8): issueW(s)
    issueA(vm, 3)
    for s in range(8, AH): issueW(s)
    for ks in range(4):
        k(f"v_add_u32 v5, {4*ks}, v4\nv_xor_b32 v5, v5, v3\nv_lshlrev_b32 v5, 4, v5\nv_lshl_add_u32 v{24+ks}, v3, 8, v5\nv_add_u32 v{28+ks}, 65536, v{24+ks}")
    for i in range(8): k(f"v_mov_b32 v{ACC+i}, 0")
    stamp(k, 2)
    N = 112
    stages = {0: 0, 8: 1, 16: 3, 32: 5, 48: 7, 64: 9, 80: 11, 96: 13}
    sched = {}
    for c in range(4, 14): sched.setdefault(6*(c-4) + 1, []).append(lambda c=c: issueA(vm, c))
    def rd(i):
        s, mt = divmod(i, 2)
        if i in stages:
            vm.wait(f"A{stages[i]}"); k("s_barrier")
        c, ks = divmod(s, 4)
        off = 8192*c + 4096*mt
        va = 24 + ks
        if c >= 8: off -= 65536; va = 28 + ks
        b = BUF + 4 * (i % D)
        k(f"ds_read_b128 v[{b}:{b+3}], v{va} offset:{off}")
    for i in range(D): rd(i)
    for i in range(N):
        s, mt = divmod(i, 2)
        b = BUF + 4 * (i % D)
        w = f"vmcnt({vm.cnt(f'W{s}')}) " if mt == 0 else ""
        k(f"s_waitcnt {w}lgkmcnt({min(D, N - i) - 1})")
        mf(k, ACC + 4*mt, WR + 4*(s % DW), b)
        for f in sched.get(i, []): f()
        if i + D < N: rd(i + D)
        if mt == 1 and s + AH < 56: issueW(s + AH)
        if mt == 1 and s == 40:
            for m2 in range(2):
                vm.op("E", f"buffer_load_dwordx2 v[{16+2*m2}:{17+2*m2}], v15, s[64:67], s{9+m2} offen")
                vm.op("E", f"buffer_load_dwordx2 v[{20+2*m2}:{21+2*m2}], v15, s[68:71], s{9+m2} offen")
            vm.op("E", f"buffer_load_dwordx4 v[4:7], v7, s[72:75], s12 offen")
    stamp(k, 3)
    k("s_waitcnt vmcnt(0)")
    for mt in range(2):
        b = ACC + 4*mt
        for r in range(4): rnd(k, b+r)
        unpack(k, 16+2*mt, 66, 67); unpack(k, 17+2*mt, 68, 69)
        for r in range(4): k(f"v_add_f32 v{b+r}, v{b+r}, v{66+r}")
        for r in range(4): rnd(k, b+r)
        for r in range(4): k(f"v_mul_f32 v{b+r}, v{b+r}, v{4+r}")
        for r in range(4): rnd(k, b+r)
        unpack(k, 20+2*mt, 66, 67); unpack(k, 21+2*mt, 68, 69)
        for r in range(4): k(f"v_add_f32 v{b+r}, v{b+r}, v{66+r}")
        pack(k, 70+2*mt, b, b+1); pack(k, 71+2*mt, b+2, b+3)
        k(f"buffer_store_dwordx2 v[{70+2*mt}:{71+2*mt}], v15, s[84:87], s{9+mt} offen")
    stamp_flush(k, 5, 4)
    k("s_endpgm")
    k(f"{L7}:")
    v7m = VM(k)
    for c in range(14): issueA(v7m, c)
    for c in (0, 1, 3, 5, 7, 9, 11, 13):
        v7m.wait(f"A{c}"); k("s_barrier")
    k(f"{Lend}:\ns_endpgm")
    return k, (256, 512, K6_LDS)
```

```python
from g2 import *
from g2_gemm import *

def build(kernels, path):
    head = open("adaLN_cond__ssm_conv_s4__mixer_s_mlp__prompt.s.ref").read().split("\n")
    out = [l for l in head if l.startswith(";") and "@launch" not in l and not l.startswith("; Override") and not l.startswith("; grid=")]
    for k, (g, b, lds) in kernels:
        out.append(f"; @launch kernel={k.name} grid=({g},1,1) block=({b},1,1) lds={lds}")
    out.append('.amdgcn_target "amdgcn-amd-amdhsa--gfx950"')
    out.append(".text")
    for k, _ in kernels: out.append(k.finish())
    out.append('.section .rodata,"a"')
    for k, _ in kernels: out.append(k.descriptor())
    text = "\n".join(out)
    def sub(cb):
        sl = (cb + 32*64 - 1) // (32*64) * 64
        return text.replace("CODE_BYTES-16", str(cb - 16)).replace("CODE_SLICE", "0x%x" % sl)
    open("_p1.s", "w").write(sub(0x12340))
    subprocess.run(["clang", "-x", "assembler", "-target", "amdgcn-amd-amdhsa", "-mcpu=gfx950", "-c", "_p1.s", "-o", "_p1.o"], check=True)
    r = subprocess.run(["llvm-objdump", "-h", "_p1.o"], capture_output=True, text=True).stdout
    cb = [int(l.split()[2], 16) for l in r.splitlines() if " .text " in l][0] // 16 * 16
    open(path, "w").write(sub(cb))
    print("code bytes", cb, " ".join(f"{k.name}:v{k.vmax}/s{k.smax}/{len(k.L)}" for k, _ in kernels))

if __name__ == "__main__":
    ks = [gen_ka(), gen_k3(), gen_k4(), gen_k5(), gen_k6()]
    build(ks, sys.argv[1] if len(sys.argv) > 1 else "full.s")
```

```python
import sys, math, os, subprocess
from asmlib import *

MB = 1 << 20
WS_MOD = 0; WS_CS3 = 16384; WS_MOD1 = 32768; WS_ST = 65536
WS_LNT = 1 * MB; WS_KH = 3 * MB; WS_KL = 5 * MB; WS_ZT = 7 * MB; WS_X1 = 9 * MB; WS_H2 = 11 * MB
WS_G = 13 * MB; WS_XP = 15 * MB; WS_H3 = 17 * MB
WS_PW1 = 25 * MB; WS_PW2 = 25 * MB + 512 * 1024; WS_PW3 = 26 * MB; WS_PW4 = 28 * MB
WS_STAMP = 31 * MB
ACT_BYTES = 2048 * 448 * 2
LOG2E = 1.4426950408889634
USE_KLO = bool(int(os.environ.get("KLO", "1")))
STAMPS = bool(int(os.environ.get("STAMPS", "0")))
GC0 = -2.0 * LOG2E * math.sqrt(2.0 / math.pi)
GC1 = GC0 * 0.044715
P = lambda i: 16 + 2 * i
S_OUT = 48; S_WS = 52
OOB = "0x7ff00000"
DEFER = int(os.environ.get("DEFER", "1"))
POLLSLEEP = int(os.environ.get("POLLSLEEP", "4"))
H3MOD = os.environ.get("H3MOD", "")
PF3 = os.environ.get("PF3", "none")
PF4 = os.environ.get("PF4", "none")
K6DW = int(os.environ.get("K6DW", "16"))

def stamp(k, i):
    if STAMPS: k(f"s_memrealtime s[{88+2*i}:{89+2*i}]")
def stamp_flush(k, kid, n):
    if not STAMPS: return
    k(f"s_memrealtime s[{88+2*n}:{89+2*n}]")
    Ls = k.label("nost")
    k(f"v_lshrrev_b32 v1, 6, v0\nv_readfirstlane_b32 s3, v1\ns_cmp_lg_u32 s3, 0\ns_cbranch_scc1 {Ls}")
    k(f"s_load_dwordx2 s[80:81], s[0:1], 144\ns_waitcnt lgkmcnt(0)")
    k(f"s_add_u32 s80, s80, {WS_STAMP + kid*65536}\ns_addc_u32 s81, s81, 0\ns_mov_b32 s82, 65536\ns_mov_b32 s83, 0x00020000")
    k(f"s_lshl_b32 s3, s2, 5\nv_mov_b32 v1, s3")
    for i in range(n+1):
        k(f"v_mov_b32 v2, s{88+2*i}\nbuffer_store_dword v2, v1, s[80:83], 0 offen offset:{4*i}")
    k(f"{Ls}:")

def load_kernargs(k):
    k("""s_load_dwordx16 s[16:31], s[0:1], 0
s_load_dwordx16 s[32:47], s[0:1], 64
s_load_dwordx4 s[48:51], s[0:1], 128
s_load_dwordx2 s[52:53], s[0:1], 144""")

def srd(k, d, base, off, size):
    if off: k(f"s_add_u32 s{d}, s{base}, {off}\ns_addc_u32 s{d+1}, s{base+1}, 0")
    else: k(f"s_mov_b32 s{d}, s{base}\ns_mov_b32 s{d+1}, s{base+1}")
    k(f"s_mov_b32 s{d+2}, {size}\ns_mov_b32 s{d+3}, 0x00020000")

def lane_ids(k):
    k("""v_and_b32 v1, 63, v0
v_lshrrev_b32 v2, 6, v0
v_and_b32 v3, 15, v0
v_bfe_u32 v4, v0, 4, 2
v_readfirstlane_b32 s7, v2""")

def dpp_sum16(k, v, t):
    k(f"""v_add_f32_dpp v{t}, v{v}, v{v} row_ror:8 row_mask:0xf bank_mask:0xf
v_add_f32_dpp v{v}, v{t}, v{t} row_ror:4 row_mask:0xf bank_mask:0xf
v_add_f32_dpp v{t}, v{v}, v{v} row_ror:2 row_mask:0xf bank_mask:0xf
v_add_f32_dpp v{v}, v{t}, v{t} row_ror:1 row_mask:0xf bank_mask:0xf""")
def sum32(k, v, t):
    dpp_sum16(k, v, t)
    k(f"v_mov_b32 v{t}, v{v}\nv_permlane16_swap_b32 v{t}, v{v}\nv_add_f32 v{v}, v{v}, v{t}")
def allred4(k, v, t):
    k(f"""v_mov_b32 v{t}, v{v}
v_permlane32_swap_b32 v{t}, v{v}
v_add_f32 v{v}, v{v}, v{t}
v_mov_b32 v{t}, v{v}
v_permlane16_swap_b32 v{t}, v{v}
v_add_f32 v{v}, v{v}, v{t}""")

def rnd(k, v): k(f"v_cvt_pk_bf16_f32 v{v}, 0, v{v}")
def unpack(k, p, a, b): k(f"v_lshlrev_b32 v{a}, 16, v{p}\nv_and_b32 v{b}, 0xffff0000, v{p}")
def pack(k, p, a, b): k(f"v_cvt_pk_bf16_f32 v{p}, v{a}, v{b}")

def den_from_var(k, v):
    rnd(k, v); k(f"v_add_f32 v{v}, {f2u(1e-5)}, v{v}"); rnd(k, v)
    k(f"v_sqrt_f32 v{v}, v{v}"); rnd(k, v); k(f"v_rcp_f32 v{v}, v{v}")

def ln_stats(k, X, T, red):
    a = T[0:4]; t = T[4]; mean = T[5]; mb = T[6]; rinv = T[7]
    n = len(X)
    for c in range(4): k(f"v_add_f32 v{a[c]}, v{X[c]}, v{X[c+4]}")
    for i in range(8, n): k(f"v_add_f32 v{a[i%4]}, v{a[i%4]}, v{X[i]}")
    k(f"v_add_f32 v{a[0]}, v{a[0]}, v{a[1]}\nv_add_f32 v{a[2]}, v{a[2]}, v{a[3]}\nv_add_f32 v{mean}, v{a[0]}, v{a[2]}")
    red(k, mean, t)
    k(f"v_mul_f32 v{mean}, {f2u(1.0/448)}, v{mean}")
    tt = [t, mb]
    for i in range(n):
        c = i % 4; u = tt[i % 2]
        k(f"v_sub_f32 v{u}, v{X[i]}, v{mean}")
        if i < 4: k(f"v_mul_f32 v{a[c]}, v{u}, v{u}")
        else: k(f"v_fmac_f32 v{a[c]}, v{u}, v{u}")
    k(f"v_add_f32 v{a[0]}, v{a[0]}, v{a[1]}\nv_add_f32 v{a[2]}, v{a[2]}, v{a[3]}\nv_add_f32 v{rinv}, v{a[0]}, v{a[2]}")
    red(k, rinv, t)
    k(f"v_mul_f32 v{rinv}, {f2u(1.0/448)}, v{rinv}")
    den_from_var(k, rinv)
    k(f"v_cvt_pk_bf16_f32 v{mb}, 0, v{mean}")
    return mb, rinv

def ln_apply(k, X, mb, rinv, outP=None):
    for x in X: k(f"v_sub_f32 v{x}, v{x}, v{mb}")
    for x in X: rnd(k, x)
    for x in X: k(f"v_mul_f32 v{x}, v{x}, v{rinv}")
    if outP:
        for i in range(0, len(X), 2): pack(k, outP[i//2], X[i], X[i+1])
    else:
        for x in X: rnd(k, x)

def gelu(k, xs, t, vc0, vc1):
    for x, u in zip(xs, t): k(f"v_mul_f32 v{u}, v{x}, v{x}")
    for x, u in zip(xs, t): k(f"v_fma_f32 v{u}, v{u}, v{vc1}, v{vc0}")
    for x, u in zip(xs, t): k(f"v_mul_f32 v{u}, v{u}, v{x}")
    for x, u in zip(xs, t): k(f"v_exp_f32 v{u}, v{u}")
    for x, u in zip(xs, t): k(f"v_add_f32 v{u}, 1.0, v{u}")
    for x, u in zip(xs, t): k(f"v_rcp_f32 v{u}, v{u}")
    for x, u in zip(xs, t): k(f"v_mul_f32 v{x}, v{x}, v{u}")

class VM:
    def __init__(self, k): self.k = k; self.q = []
    def op(self, tag, text): self.k(text); self.q.append(tag)
    def cnt(self, tag):
        idx = max(i for i, t in enumerate(self.q) if t == tag)
        return len(self.q) - 1 - idx
    def wait(self, tag): self.k(f"s_waitcnt vmcnt({self.cnt(tag)})")

def cmul(k, dr, di, ar, ai, br, bi):
    k(f"""v_mul_f32 v{dr}, v{ar}, v{br}
v_mul_f32 v{di}, v{ar}, v{bi}
v_fma_f32 v{dr}, -v{ai}, v{bi}, v{dr}
v_fmac_f32 v{di}, v{ai}, v{br}""")

def signal(k, idx):
    Ls = k.label("sig")
    k(f"""s_cmp_lg_u32 s7, 0
s_cbranch_scc1 {Ls}
v_mov_b32 v104, 1
v_mov_b32 v105, 0
s_mov_b64 s[10:11], exec
s_mov_b64 exec, 1
global_atomic_add v106, v105, v104, s[50:51] sc0 sc1
s_waitcnt vmcnt(0)
v_readfirstlane_b32 s12, v106
s_mov_b64 exec, s[10:11]
s_cmp_lg_u32 s12, 105
s_cbranch_scc1 {Ls}
s_mov_b64 exec, 1
global_store_dword v105, v104, s[50:51] offset:128 sc1
s_mov_b64 exec, s[10:11]
{Ls}:""")

def wait_go(k):
    Lp = k.label("poll"); Lq = k.label("polld")
    k(f"""s_cmp_lg_u32 s7, 0
s_cbranch_scc1 {Lq}
v_mov_b32 v20, 0
s_mov_b32 s12, 0x200000
{Lp}:
global_load_dword v21, v20, s[50:51] offset:128 sc1
s_waitcnt vmcnt(0)
v_readfirstlane_b32 s10, v21
s_sub_u32 s12, s12, 1
s_cmp_eq_u32 s12, 0
s_cbranch_scc1 {Lq}
s_cmp_lg_u32 s10, 0
s_cbranch_scc1 {Lq}
s_sleep {POLLSLEEP}
s_branch {Lp}
{Lq}:""")

def role_ln(k, kid):
    S = 904
    k("s_setprio 3")
    srd(k, 56, P(0), 0, ACT_BYTES)
    srd(k, 60, S_WS, WS_LNT, ACT_BYTES)
    k(f"""s_mul_i32 s5, s4, {32*896}
v_lshl_add_u32 v5, v2, 3, v4
v_mul_u32_u24 v6, 896, v5
v_lshl_add_u32 v6, v3, 3, v6
v_add_u32 v7, 3584, v6""")
    RAW = [list(range(10, 24)), list(range(24, 38))]
    for p in range(2):
        for i in range(7):
            k(f"buffer_load_dwordx2 v[{RAW[p][2*i]}:{RAW[p][2*i+1]}], v{6+p}, s[56:59], s5 offen offset:{128*i}")
    k(f"v_mul_u32_u24 v8, {S}, v5\nv_lshl_add_u32 v8, v3, 3, v8")
    X = list(range(40, 68)); T = list(range(68, 76))
    for p in range(2):
        k(f"s_waitcnt vmcnt({7 if p == 0 else 0})")
        for i in range(14): unpack(k, RAW[p][i], X[2*i], X[2*i+1])
        mb, rinv = ln_stats(k, X, T, dpp_sum16)
        ln_apply(k, X, mb, rinv, RAW[p])
        for i in range(7):
            k(f"ds_write_b64 v8, v[{RAW[p][2*i]}:{RAW[p][2*i+1]}] offset:{128*i + p*4*S}")
    k(f"""v_lshrrev_b32 v9, 2, v3
v_lshl_add_u32 v9, v4, 3, v9
v_mul_u32_u24 v9, {S}, v9
v_and_b32 v5, 3, v3
v_lshl_add_u32 v9, v5, 3, v9
v_lshl_add_u32 v9, v2, 5, v9
v_lshl_add_u32 v5, v2, 4, v3
v_lshlrev_b32 v5, 6, v5
v_lshl_add_u32 v5, v4, 4, v5
s_mul_i32 s5, s4, 28672
s_waitcnt lgkmcnt(0)
s_barrier""")
    for j in range(7):
        b = 10 + 4*j
        k(f"ds_read_b64_tr_b16 v[{b}:{b+1}], v9 offset:{128*j}")
        k(f"ds_read_b64_tr_b16 v[{b+2}:{b+3}], v9 offset:{128*j + 4*S}")
    for j in range(7):
        b = 10 + 4*j
        k(f"s_waitcnt lgkmcnt({12 - 2*j})")
        k(f"buffer_store_dwordx4 v[{b}:{b+3}], v5, s[60:63], s5 offen sc1")
        if j < 6: k(f"s_add_u32 s5, s5, 4096")
    k("s_waitcnt vmcnt(0)\ns_barrier")
    signal(k, 0)
    stamp(k, 1); stamp(k, 2); stamp(k, 3); stamp(k, 4); stamp(k, 5); stamp_flush(k, kid, 6)
    k("s_endpgm")

def role_gemv(k, kid, is_mod):
    RB = 5376 if is_mod else 3584
    Lx = k.label("gx")
    if is_mod:
        k("s_setprio 3")
        srd(k, 56, P(15), 0, 448*5376)
        srd(k, 60, S_WS, WS_MOD, WS_MOD1 + 2688*4)
        srd(k, 64, P(14), 0, 896)
        k(f"""v_lshlrev_b32 v5, 1, v0
buffer_load_ushort v6, v5, s[64:67], 0 offen
buffer_load_ushort v7, v5, s[64:67], 0 offen offset:512""")
    else:
        if DEFER: wait_go(k); k("s_barrier")
        srd(k, 56, P(12), 0, 448*3584)
        srd(k, 60, S_WS, WS_CS3, 1792*4)
    k(f"""v_lshl_add_u32 v8, v2, 2, v4
v_mul_u32_u24 v9, {RB}, v8
v_lshl_add_u32 v9, v3, 3, v9
s_lshl_b32 s5, s4, 7""")
    for i in range(28):
        k(f"buffer_load_dwordx2 v[{10+2*i}:{11+2*i}], v9, s[56:59], s5 offen")
        if i < 27: k(f"s_add_u32 s5, s5, {16*RB}")
    if is_mod:
        k("s_waitcnt vmcnt(28)")
        for v in (6, 7):
            k(f"""v_lshlrev_b32 v{v}, 16, v{v}
v_mul_f32 v5, {f2u(-LOG2E)}, v{v}
v_exp_f32 v5, v5
v_add_f32 v5, 1.0, v5
v_rcp_f32 v5, v5
v_mul_f32 v{v}, v{v}, v5""")
            rnd(k, v)
        k(f"""v_lshlrev_b32 v5, 2, v0
ds_write_b32 v5, v6
ds_write_b32 v5, v7 offset:1024
v_lshlrev_b32 v5, 2, v8
s_waitcnt lgkmcnt(0)
s_barrier""")
        for i in range(28): k(f"ds_read_b32 v{66+i}, v5 offset:{64*i}")
    k("v_mov_b32 v96, 0\nv_mov_b32 v97, 0\nv_mov_b32 v98, 0\nv_mov_b32 v99, 0\ns_waitcnt lgkmcnt(0)")
    for i in range(28):
        k(f"s_waitcnt vmcnt({27-i})")
        unpack(k, 10+2*i, 100, 101); unpack(k, 11+2*i, 102, 103)
        for c in range(4):
            k(f"v_fmac_f32 v{96+c}, v{100+c}, v{66+i}" if is_mod else f"v_add_f32 v{96+c}, v{96+c}, v{100+c}")
    k(f"""v_lshlrev_b32 v5, 8, v8
v_lshl_add_u32 v5, v3, 4, v5
ds_write_b128 v5, v[96:99] offset:2048
v_lshlrev_b32 v5, 2, v0
s_waitcnt lgkmcnt(0)
s_barrier
s_cmp_lg_u32 s7, 0
s_cbranch_scc1 {Lx}""")
    for i in range(16): k(f"ds_read_b32 v{10+i}, v5 offset:{2048 + 256*i}")
    k("s_waitcnt lgkmcnt(0)")
    for st in (8, 4, 2, 1):
        for i in range(st): k(f"v_add_f32 v{10+i}, v{10+i}, v{10+i+st}")
    k("s_lshl_b32 s5, s4, 8")
    if is_mod:
        rnd(k, 10); k("v_add_f32 v11, 1.0, v10"); rnd(k, 11)
        k(f"s_add_u32 s6, s5, {WS_MOD1 - WS_MOD}\nbuffer_store_dword v11, v5, s[60:63], s6 offen sc1")
        k("buffer_store_dword v10, v5, s[60:63], s5 offen sc1\ns_waitcnt vmcnt(0)")
        signal(k, 1)
    else:
        k("buffer_store_dword v10, v5, s[60:63], s5 offen")
    stamp(k, 1); stamp(k, 2); stamp(k, 3); stamp(k, 4); stamp(k, 5); stamp_flush(k, kid, 6)
    k(f"{Lx}:\ns_endpgm")

def role_repack(k, kid):
    La, Lb, Lc, Ld = k.label("rp"), k.label("rp"), k.label("rp"), k.label("rp")
    if DEFER: wait_go(k); k("s_barrier")
    k(f"s_cmp_ge_u32 s4, 84\ns_cbranch_scc1 {Lc}\ns_cmp_ge_u32 s4, 28\ns_cbranch_scc1 {Lb}\ns_cmp_ge_u32 s4, 14\ns_cbranch_scc1 {La}")
    srd(k, 56, P(10), 0, 448*896)
    k(f"s_mov_b32 s6, 896\ns_mul_i32 s5, s4, {32*896}\ns_mul_i32 s8, s4, 7168\ns_add_u32 s8, s8, {WS_PW1}\ns_mov_b32 s9, {14*7168}\ns_branch {Ld}\n{La}:")
    srd(k, 56, P(11), 0, 448*896)
    k(f"s_sub_u32 s4, s4, 14\ns_mov_b32 s6, 896\ns_mul_i32 s5, s4, {32*896}\ns_mul_i32 s8, s4, 7168\ns_add_u32 s8, s8, {WS_PW2}\ns_mov_b32 s9, {14*7168}\ns_branch {Ld}\n{Lb}:")
    srd(k, 56, P(13), 0, 1792*896)
    k(f"s_sub_u32 s4, s4, 28\ns_mov_b32 s6, 896\ns_mul_i32 s5, s4, {32*896}\ns_mul_i32 s8, s4, 7168\ns_add_u32 s8, s8, {WS_PW4}\ns_mov_b32 s9, {56*7168}\ns_branch {Ld}\n{Lc}:")
    srd(k, 56, P(12), 0, 448*3584)
    k(f"""s_sub_u32 s4, s4, 84
s_and_b32 s10, s4, 3
s_lshr_b32 s4, s4, 2
s_mov_b32 s6, 3584
s_mul_i32 s5, s4, {32*3584}
s_mul_i32 s11, s10, 896
s_add_u32 s5, s5, s11
s_mul_i32 s8, s4, 7168
s_mul_i32 s11, s10, {4*14*7168}
s_add_u32 s8, s8, s11
s_add_u32 s8, s8, {WS_PW3}
s_mov_b32 s9, {14*7168}
{Ld}:""")
    srd(k, 60, S_WS, 0, 30*MB)
    k(f"s_lshl_b32 s10, s7, 10")
    for j in range(7):
        k(f"""v_add_u32 v5, {256*j}, v0
v_mul_u32_u24 v6, 18725, v5
v_lshrrev_b32 v6, 20, v6
v_mul_u32_u24 v7, 56, v6
v_sub_u32 v7, v5, v7
v_mul_lo_u32 v6, v6, s6
v_lshl_add_u32 v6, v7, 4, v6
s_add_u32 m0, s10, {4096*j}
s_nop 0
buffer_load_dwordx4 v6, s[56:59], s5 offen lds""")
    k(f"""v_lshrrev_b32 v5, 2, v3
v_lshl_add_u32 v5, v4, 3, v5
v_mul_u32_u24 v5, 896, v5
v_and_b32 v6, 3, v3
v_lshl_add_u32 v5, v6, 3, v5
v_mul_u32_u24 v6, 224, v2
v_add_u32 v5, v5, v6
v_lshlrev_b32 v6, 4, v1
s_mul_i32 s9, s9, s7
s_add_u32 s8, s8, s9
s_waitcnt vmcnt(0)
s_barrier""")
    for nu in range(7):
        b = 10 + 4*nu
        k(f"ds_read_b64_tr_b16 v[{b}:{b+1}], v5 offset:{32*nu}")
        k(f"ds_read_b64_tr_b16 v[{b+2}:{b+3}], v5 offset:{32*nu + 4*896}")
    for nu in range(7):
        b = 10 + 4*nu
        k(f"s_waitcnt lgkmcnt({12 - 2*nu})")
        if nu == 4: k("s_add_u32 s8, s8, 4096")
        k(f"buffer_store_dwordx4 v[{b}:{b+3}], v6, s[60:63], s8 offen offset:{1024*(nu%4)}")
    stamp(k, 1); stamp(k, 2); stamp(k, 3); stamp(k, 4); stamp(k, 5); stamp_flush(k, kid, 6)
    k("s_endpgm")

K2_CS = 4256; K2_KH = 8 * K2_CS; K2_KSZ = 4576; K2_RED = K2_CS; K2_FT = K2_KH + 2 * K2_KSZ; K2_LDS = K2_FT + 3072
def role_ssm(k, kid):
    WREG = 8704; FT = K2_FT
    CS = K2_CS; KH = K2_KH; KSZ = K2_KSZ; RED = K2_RED
    k(f"""s_lshl_b32 s5, s4, 9
v_lshl_add_u32 v5, v0, 1, s5
s_and_b32 s6, s4, 0xfffffffe
s_lshl_b32 s6, s6, 1
s_waitcnt lgkmcnt(0)""")
    for i in range(6):
        k(f"global_load_ushort v{10+i}, v5, s[{P(1+i)}:{P(1+i)+1}]")
    k(f"""s_add_u32 s8, s{P(7)}, s6
s_addc_u32 s9, s{P(7)+1}, 0
s_load_dword s10, s[8:9], 0
s_add_u32 s8, s{P(8)}, s6
s_addc_u32 s9, s{P(8)+1}, 0
s_load_dword s15, s[8:9], 0
v_mul_u32_u24 v6, {WREG}, v2
v_lshl_add_u32 v7, v1, 2, v6""")
    WB = list(range(100, 108))
    for i in range(8): k(f"v_add_u32 v{WB[i]}, {i*1088}, v7")
    VMASK = 160; VSEL = 161
    k(f"""v_mul_u32_u24 v8, 544, v3
v_add_u32 v8, v8, v6
v_lshl_add_u32 v8, v4, 4, v8
v_mov_b32 v{VMASK}, 0xffff0000
v_mov_b32 v{VSEL}, 0x07060302
s_waitcnt lgkmcnt(0)
s_and_b32 s11, s4, 1
s_lshl_b32 s11, s11, 4
s_lshr_b32 s10, s10, s11
s_lshl_b32 s10, s10, 16
s_lshr_b32 s15, s15, s11
s_lshl_b32 s15, s15, 16
v_mov_b32 v9, s10
v_mul_f32 v9, {f2u(LOG2E)}, v9
v_exp_f32 v9, v9""")
    rnd(k, 9)
    k("s_waitcnt vmcnt(0)")
    stamp(k, 1)
    for i in range(6): k(f"v_lshlrev_b32 v{10+i}, 16, v{10+i}")
    k("v_mul_f32 v10, v9, v10\nv_mul_f32 v11, v9, v11\nv_mul_f32 v12, v9, v12\nv_mul_f32 v13, v9, v13")
    W0 = (16, 17)
    cmul(k, 16, 17, 14, 15, 12, 13)
    def cexp(dr, di, m, t0, t1, conj=False):
        k(f"""v_mul_f32 v{t0}, {f2u(m*LOG2E)}, v10
v_mul_f32 v{t1}, {f2u((-m if conj else m)/(2*math.pi))}, v11
v_exp_f32 v{t0}, v{t0}
v_fract_f32 v{t1}, v{t1}
v_cos_f32 v{dr}, v{t1}
v_sin_f32 v{di}, v{t1}
v_mul_f32 v{dr}, v{dr}, v{t0}
v_mul_f32 v{di}, v{di}, v{t0}""")
    U = {u: (18 + 2*u, 19 + 2*u) for u in range(1, 8)}
    E8 = (34, 35); E16 = (36, 37); E128 = (38, 39); E256 = (40, 41)
    cexp(U[1][0], U[1][1], 1.0, 42, 43)
    cexp(E8[0], E8[1], 8.0, 44, 45, conj=True)
    cexp(E128[0], E128[1], 128.0, 46, 47)
    cnt = [0]
    TS = [(48, 49, 50, 51), (52, 53, 54, 55)]
    def emit_val(p, vr_, vi_):
        cnt[0] += 1
        h, a, b, lo = TS[cnt[0] % 2]
        k(f"""v_and_b32 v{a}, v{VMASK}, v{vr_}
v_and_b32 v{b}, v{VMASK}, v{vi_}
v_perm_b32 v{h}, v{vi_}, v{vr_}, v{VSEL}
v_sub_f32 v{a}, v{vr_}, v{a}
v_sub_f32 v{b}, v{vi_}, v{b}
v_cvt_pk_bf16_f32 v{lo}, v{a}, v{b}""")
        o = (p % 2) * 136
        k(f"ds_write2_b32 v{WB[p//2]}, v{h}, v{lo} offset0:{o} offset1:{o+68}")
    cmul(k, E16[0], E16[1], E8[0], E8[1], E8[0], E8[1])
    k("v_mov_b32 v48, 0x3f80\nv_mov_b32 v49, 0")
    k(f"ds_write2_b32 v{WB[0]}, v48, v49 offset0:0 offset1:68")
    emit_val(1, E8[0], E8[1]); emit_val(2, E16[0], E16[1])
    ev = E16; od = E8
    bufs = [(56, 57), (58, 59), (60, 61), (62, 63)]
    bi = 0
    for j in range(3, 16):
        src = od if j % 2 else ev
        d = bufs[bi % 4]; bi += 1
        cmul(k, d[0], d[1], src[0], src[1], E16[0], E16[1])
        emit_val(j, d[0], d[1])
        if j % 2: od = d
        else: ev = d
    for (u, a, b) in ((2, 1, 1), (3, 2, 1), (4, 2, 2), (5, 4, 1), (6, 4, 2), (7, 4, 3)):
        cmul(k, U[u][0], U[u][1], U[a][0], U[a][1], U[b][0], U[b][1])
    cmul(k, E256[0], E256[1], E128[0], E128[1], E128[0], E128[1])
    RF = 64
    k("s_waitcnt lgkmcnt(0)")
    for lo in range(2):
        for s in range(4):
            b = RF + 16*lo + 4*s
            k(f"ds_read_b128 v[{b}:{b+3}], v8 offset:{64*s + 272*lo}")
    LF = 108; ACC = 140
    for i in range(12): k(f"v_mov_b32 v{ACC+i}, 0")
    Wreg = {0: W0}
    wb = [(152, 153), (154, 155), (156, 157), (158, 159)]
    wi = [0]
    def getW(v):
        if v in Wreg: return Wreg[v]
        d = wb[wi[0] % 4]; wi[0] += 1
        if v == 1: cmul(k, d[0], d[1], W0[0], W0[1], E128[0], E128[1])
        else:
            s = getW(v-2)
            cmul(k, d[0], d[1], s[0], s[1], E256[0], E256[1])
        Wreg[v] = d
        return d
    tiles = [
        [(v, u) for v in (0, 1) for u in range(8)],
        [(v, u) for v in (2, 3) for u in (0, 2, 4, 6)] + [(v, u) for v in (4, 5, 6, 7) for u in (0, 4)],
        [(v, 0) for v in range(8, 17)],
    ]
    for ti, rows in enumerate(tiles):
        if ti == 0: k("s_waitcnt lgkmcnt(0)")
        for p, (v, u) in enumerate(rows):
            w = getW(v)
            if u == 0: emit_val(p, w[0], w[1])
            else:
                d = bufs[bi % 4]; bi += 1
                cmul(k, d[0], d[1], w[0], w[1], U[u][0], U[u][1])
                emit_val(p, d[0], d[1])
        k("s_waitcnt lgkmcnt(0)")
        for lo in range(2):
            for s in range(4):
                b = LF + 16*lo + 4*s
                k(f"ds_read_b128 v[{b}:{b+3}], v8 offset:{64*s + 272*lo}")
        a = ACC + 4*ti
        seq = [(0, s, 0, s) for s in range(4)] + [(0, s, 1, s) for s in range(4)] + [(1, s, 0, s) for s in range(4)]
        for n, (ll, s, rl, s2) in enumerate(seq):
            if n < 4: k(f"s_waitcnt lgkmcnt({7-n})")
            if n == 8: k("s_waitcnt lgkmcnt(0)")
            lb = LF + 16*ll + 4*s; rb = RF + 16*rl + 4*s2
            k(f"v_mfma_f32_16x16x32_bf16 v[{a}:{a+3}], v[{lb}:{lb+3}], v[{rb}:{rb+3}], v[{a}:{a+3}]")
    stamp(k, 2)
    k(f"""v_and_b32 v10, 1, v4
v_lshrrev_b32 v11, 1, v4
v_lshlrev_b32 v12, 4, v10
v_lshl_add_u32 v12, v11, 9, v12
v_lshl_add_u32 v12, v3, 5, v12
v_add_u32 v12, v12, v6
v_lshlrev_b32 v13, 8, v10
v_lshl_add_u32 v14, v3, 4, v13
v_add_u32 v14, 1024, v14
v_lshl_add_u32 v15, v3, 3, v13
v_add_u32 v15, 1536, v15
v_cmp_gt_u32 vcc, 2, v4
v_cndmask_b32 v14, v15, v14, vcc
v_mov_b32 v15, 128
v_cndmask_b32 v15, v15, 8, vcc
v_add_u32 v14, v14, v6
v_add_u32 v15, v15, v14
v_lshlrev_b32 v16, 8, v4
v_lshl_add_u32 v16, v3, 2, v16
v_add_u32 v16, v16, v6
ds_write_b128 v12, v[{ACC}:{ACC+3}]
ds_write_b64 v14, v[{ACC+4}:{ACC+5}]
ds_write_b64 v15, v[{ACC+6}:{ACC+7}]""")
    for r in range(4): k(f"ds_write_b32 v16, v{ACC+8+r} offset:{2048 + 64*r}")
    k(f"""v_lshlrev_b32 v17, 2, v0
v_lshlrev_b32 v18, 3, v0
v_cvt_f32_u32 v40, v18
s_mov_b32 s12, {(FT - 0x10A00) & 0xffffffff}
v_cmp_gt_u32 vcc, 16, v0
v_lshlrev_b32 v18, 5, v0""")
    for e in range(1, 8): k(f"v_add_f32 v{40+e}, {f2u(float(e))}, v40")
    for pz in range(4): k(f"v_cvt_pk_bf16_f32 v{50+pz}, v{40+2*pz}, v{41+2*pz}")
    for pz in range(4): k(f"v_and_b32 v{40+2*pz}, 0xffff, v{50+pz}\nv_lshrrev_b32 v{41+2*pz}, 16, v{50+pz}")
    for e in range(8):
        k(f"v_lshl_add_u32 v{40+e}, v{40+e}, 2, s12\nv_add_u32 v54, {FT + 4*e}, v18\nv_cndmask_b32 v{40+e}, v{40+e}, v54, vcc")
    srd(k, 56, S_WS, WS_LNT, ACT_BYTES)
    srd(k, 60, S_WS, 0, WS_MOD1 + 2688*4)
    srd(k, 68, S_WS, WS_ZT, ACT_BYTES)
    k(f"""s_lshl_b32 s5, s4, 6
v_lshrrev_b32 v5, 2, v0
v_mul_u32_u24 v5, 28672, v5
v_and_b32 v6, 3, v0
v_lshl_add_u32 v5, v6, 4, v5
v_add_u32 v5, s5, v5
v_subrev_u32 v6, 1, v0
v_max_i32 v6, 0, v6
v_lshrrev_b32 v19, 2, v6
v_mul_u32_u24 v19, 28672, v19
v_and_b32 v6, 3, v6
v_lshl_add_u32 v6, v6, 4, v19
v_add_u32 v6, s5, v6
s_lshl_b32 s8, s4, 2
v_mov_b32 v19, s8
""")
    wait_go(k)
    k("""s_waitcnt lgkmcnt(0)
s_barrier""")
    stamp(k, 3)
    k(f"""buffer_load_dwordx4 v[100:103], v6, s[56:59], 0 offen sc1
buffer_load_dwordx4 v[104:107], v5, s[56:59], 0 offen sc1
buffer_load_dword v108, v19, s[60:63], 0 offen offset:{WS_MOD} sc1
buffer_load_dword v109, v19, s[60:63], 0 offen offset:{WS_MOD + 896*4} sc1
v_add_u32 v19, {WS_MOD1 + 448*4}, v19
buffer_load_dword v110, v19, s[60:63], 0 offen sc1""")
    for t in range(3):
        for w in range(4): k(f"ds_read_b32 v{20+4*t+w}, v17 offset:{w*WREG + 1024*t}")
    k("s_waitcnt lgkmcnt(0)")
    for t in range(3):
        b = 20 + 4*t
        k(f"v_add_f32 v{b}, v{b}, v{b+1}\nv_add_f32 v{b+2}, v{b+2}, v{b+3}\nv_add_f32 v{b}, v{b}, v{b+2}")
        k(f"ds_write_b32 v17, v{b} offset:{FT + 1024*t}")
    k(f"""v_and_b32 v16, 31, v1
v_min_u32 v16, 29, v16
v_lshlrev_b32 v16, 4, v16
v_lshrrev_b32 v17, 5, v1
v_mul_u32_u24 v17, {KSZ}, v17
v_add_u32 v16, v16, v17
v_add_u32 v16, {KH}, v16
v_mul_u32_u24 v17, {CS}, v1
v_cmp_gt_u32 vcc, 8, v1
v_cndmask_b32 v17, 16, v17, vcc
v_and_b32 v18, 1, v2
v_cmp_eq_u32 vcc, 1, v18
v_cndmask_b32 v16, v16, v17, vcc
v_mov_b32 v20, 0
v_mov_b32 v21, 0
v_mov_b32 v22, 0
v_mov_b32 v23, 0
v_lshlrev_b32 v17, 4, v0
v_mov_b32 v63, s15
s_waitcnt lgkmcnt(0)
s_barrier""")
    for e in range(8): k(f"ds_read_b32 v{80+e}, v{40+e}")
    k("ds_write_b128 v16, v[20:23]\ns_waitcnt lgkmcnt(1)")
    for pz in range(4):
        a, b = 87 - 2*pz, 86 - 2*pz
        k(f"v_cvt_pk_bf16_f32 v{70+pz}, v{a}, v{b}")
    k(f"ds_write_b128 v17, v[70:73] offset:{KH + 480}")
    if USE_KLO:
        for pz in range(4):
            a, b = 87 - 2*pz, 86 - 2*pz
            unpack(k, 70+pz, 88, 89)
            k(f"v_sub_f32 v{a}, v{a}, v88\nv_sub_f32 v{b}, v{b}, v89\nv_cvt_pk_bf16_f32 v{74+pz}, v{a}, v{b}")
        k(f"ds_write_b128 v17, v[74:77] offset:{KH + 480 + KSZ}")
    k("v_cmp_eq_u32 vcc, 0, v0\ns_waitcnt vmcnt(0)\nv_mov_b32 v62, v109")
    for i in range(8):
        unpack(k, 100+i, 42, 43)
        k("v_mul_f32 v42, v42, v110\nv_mul_f32 v43, v43, v110")
        rnd(k, 42); rnd(k, 43)
        k(f"v_add_f32 v42, v42, v108\nv_add_f32 v43, v43, v108\nv_cvt_pk_bf16_f32 v{24+i}, v42, v43")
        if i < 4: k(f"v_cndmask_b32 v{24+i}, v{24+i}, 0, vcc")
    for i in range(1, 7): k(f"v_mov_b32 v{33+i}, v{24+i}")
    for i in range(7): k(f"v_alignbyte_b32 v{46+i}, v{25+i}, v{24+i}, 2")
    for i in range(1, 7): k(f"v_mov_b32 v{53+i}, v{46+i}")
    k(f"ds_write_b128 v17, v[28:31] offset:32")
    srcs = {1: 46, 2: 34, 3: 54, 4: 26, 5: 48, 6: 36, 7: 56}
    for s in range(1, 8):
        b = srcs[s]
        k(f"ds_write_b128 v17, v[{b}:{b+3}] offset:{s*CS + 16}")
    k(f"""v_add_u32 v18, 1, v3
v_and_b32 v19, 7, v18
v_mul_u32_u24 v19, {CS}, v19
v_lshrrev_b32 v18, 3, v18
v_sub_u32 v18, v18, v4
v_add_u32 v18, 3, v18
v_lshl_add_u32 v19, v18, 4, v19
v_lshl_add_u32 v19, v2, 7, v19
v_lshlrev_b32 v18, 5, v3
v_lshl_add_u32 v18, v4, 4, v18
v_lshlrev_b32 v20, 7, v2
v_sub_u32 v18, v18, v20
v_add_u32 v18, {KH + 384}, v18""")
    ACC = 64; AF = 96; BH = 128; BL = 128
    for i in range(32): k(f"v_mov_b32 v{ACC+i}, 0")
    k("s_waitcnt lgkmcnt(0)\ns_barrier")
    stamp(k, 4)
    for rr in range(2):
        for m in range(8):
            k(f"ds_read_b128 v[{AF+4*m}:{AF+4*m+3}], v19 offset:{64*rr + 512*m}")
            k(f"ds_read_b128 v[{BH+4*m}:{BH+4*m+3}], v18 offset:{64*(1-rr) + 512*m}")
        for mx in range(8):
            k(f"s_waitcnt lgkmcnt({14 - 2*mx})" if mx < 7 else "s_waitcnt lgkmcnt(0)")
            for m in range(8):
                for mp in range(8):
                    if max(m, mp) == mx and m + mp <= 7:
                        a = ACC + 4*(m+mp)
                        k(f"v_mfma_f32_16x16x32_bf16 v[{a}:{a+3}], v[{AF+4*m}:{AF+4*m+3}], v[{BH+4*mp}:{BH+4*mp+3}], v[{a}:{a+3}]")
        if USE_KLO:
            for m in range(8):
                k(f"ds_read_b128 v[{BL+4*m}:{BL+4*m+3}], v18 offset:{64*(1-rr) + 512*m + KSZ}")
            for mp in range(8):
                k(f"s_waitcnt lgkmcnt({7-mp})")
                for m in range(8 - mp):
                    a = ACC + 4*(m+mp)
                    k(f"v_mfma_f32_16x16x32_bf16 v[{a}:{a+3}], v[{AF+4*m}:{AF+4*m+3}], v[{BL+4*mp}:{BL+4*mp+3}], v[{a}:{a+3}]")
    stamp(k, 5)
    k(f"""v_lshlrev_b32 v20, 4, v1
v_lshl_add_u32 v21, v2, 13, v20
v_lshl_add_u32 v20, v2, 11, v20
v_add_u32 v20, {RED}, v20
v_add_u32 v21, {RED}, v21
s_barrier""")
    for I in range(8): k(f"ds_write_b128 v21, v[{ACC+4*I}:{ACC+4*I+3}] offset:{1024*I}")
    k(f"""v_lshlrev_b32 v22, 5, v3
v_lshl_add_u32 v22, v4, 3, v22
v_lshl_add_u32 v22, v2, 10, v22
v_lshl_add_u32 v23, v2, 5, v3
v_mul_u32_u24 v23, 14336, v23
v_lshl_add_u32 v23, v4, 3, v23
s_lshl_b32 s16, s4, 5
s_add_u32 s17, s16, {16*14336}
s_waitcnt lgkmcnt(0)
s_barrier""")
    for ii in range(2):
        for w in range(4):
            b = 96 + 16*ii + 4*w
            k(f"ds_read_b128 v[{b}:{b+3}], v20 offset:{8192*w + 1024*ii}")
        k(f"ds_read_b64 v[{128+2*ii}:{129+2*ii}], v22 offset:{32 + 512*ii}")
    for ii in range(2):
        b = 96 + 16*ii
        k(f"s_waitcnt lgkmcnt({5 if ii == 0 else 0})")
        for r in range(4):
            k(f"v_add_f32 v{b+r}, v{b+r}, v{b+4+r}\nv_add_f32 v{b+8+r}, v{b+8+r}, v{b+12+r}\nv_add_f32 v{b+r}, v{b+r}, v{b+8+r}")
        unpack(k, 128+2*ii, b+4, b+5); unpack(k, 129+2*ii, b+6, b+7)
        for r in range(4): rnd(k, b+r)
        for r in range(4): k(f"v_mul_f32 v{b+4+r}, v{b+4+r}, v63")
        for r in range(4): rnd(k, b+4+r)
        for r in range(4): k(f"v_add_f32 v{b+r}, v{b+r}, v{b+4+r}")
        for r in range(4): rnd(k, b+r)
        for r in range(4): k(f"v_mul_f32 v{b+r}, v{b+r}, v62")
        pack(k, b+8, b, b+1); pack(k, b+9, b+2, b+3)
        k(f"buffer_store_dwordx2 v[{b+8}:{b+9}], v23, s[68:71], s{16+ii} offen")
    stamp_flush(k, kid, 6)
    k("s_endpgm")


KA_WGS = 64 + 42 + 28 + 140 + 448
def gen_ka():
    k = Kern("ka_kernel")
    k(f"s_cmp_ge_u32 s2, {KA_WGS}\ns_cbranch_scc1 ka_end")
    stamp(k, 0)
    load_kernargs(k); lane_ids(k)
    k(f"""s_getpc_b64 s[8:9]
k1_pc:
s_lshr_b32 s10, s2, 3
s_and_b32 s10, s10, 31
s_mul_i32 s10, s10, CODE_SLICE
s_sub_u32 s8, s8, k1_pc-ka_kernel
s_subb_u32 s9, s9, 0
v_lshl_add_u32 v5, v0, 4, s10
v_min_u32 v5, CODE_BYTES-16, v5
global_load_dwordx4 v[156:159], v5, s[8:9]
s_sub_u32 s4, s2, 274
s_cmp_ge_u32 s2, 274
s_cbranch_scc1 ka_ssm
s_waitcnt lgkmcnt(0)
s_sub_u32 s4, s2, 134
s_cmp_ge_u32 s2, 134
s_cbranch_scc1 ka_rp
s_sub_u32 s4, s2, 106
s_cmp_ge_u32 s2, 106
s_cbranch_scc1 ka_cs
s_sub_u32 s4, s2, 64
s_cmp_ge_u32 s2, 64
s_cbranch_scc1 ka_mod
s_mov_b32 s4, s2""")
    role_ln(k, 0)
    k("ka_mod:"); role_gemv(k, 0, True)
    k("ka_cs:"); role_gemv(k, 0, False)
    k("ka_rp:"); role_repack(k, 0)
    k("ka_ssm:"); role_ssm(k, 0)
    k("ka_end:\ns_endpgm")
    return k, (KA_WGS, 256, K2_LDS)
```

```python
from g2 import *

def tile_ids32(k):
    k("""s_and_b32 s4, s2, 7
s_lshr_b32 s5, s2, 3
s_lshl_b32 s4, s4, 3
s_lshr_b32 s6, s5, 2
s_add_u32 s4, s4, s6
s_lshl_b32 s4, s4, 5
s_and_b32 s5, s5, 3
s_mul_i32 s6, s5, 112""")

def afrag_base64(k, de, do, t1):
    k(f"""v_lshrrev_b32 v{t1}, 1, v3
v_xor_b32 v{t1}, v{t1}, v4
v_lshlrev_b32 v{t1}, 4, v{t1}
v_lshl_add_u32 v{de}, v3, 7, v{t1}
v_xor_b32 v{do}, 64, v{de}""")

def l2_prefetch(k, srdP, slice_bytes, nloads, vtid16, sT, VD):
    k(f"s_lshr_b32 s{sT}, s2, 3\ns_mul_i32 s{sT}, s{sT}, {slice_bytes}")
    for j in range(nloads):
        k(f"buffer_load_dwordx4 v[{VD}:{VD+3}], v{vtid16}, s[{srdP}:{srdP+3}], s{sT} offen")
        if j < nloads-1: k(f"s_add_u32 s{sT}, s{sT}, 8192")

def capture(k, fn):
    save = k.L; k.L = []
    fn()
    got = k.L; k.L = save
    return got

def interleave(k, lines, bg, start=0):
    n = len(lines) - start
    pos = {}
    for j, f in enumerate(bg):
        pos.setdefault(start + (j * n) // max(1, len(bg)), []).append(f)
    for i, ln in enumerate(lines):
        for f in pos.get(i, []): f()
        k.L.append(ln)

def mf(k, a, w, b):
    k(f"v_mfma_f32_16x16x32_bf16 v[{a}:{a+3}], v[{w}:{w+3}], v[{b}:{b+3}], v[{a}:{a+3}]")

K3_AZ = 0; K3_Z2 = 16384; K3_LDS = 16384 + 16*904 + 64
def gen_k3():
    k = Kern("k3_kernel"); vm = VM(k)
    Lend = "k3_end"
    k(f"s_cmp_ge_u32 s2, 256\ns_cbranch_scc1 {Lend}")
    stamp(k, 0)
    k("s_load_dwordx2 s[52:53], s[0:1], 144\ns_load_dwordx2 s[16:17], s[0:1], 0")
    lane_ids(k)
    k(f"""s_and_b32 s4, s2, 7
s_lshr_b32 s5, s2, 3
s_lshl_b32 s4, s4, 4
s_lshr_b32 s6, s5, 1
s_add_u32 s4, s4, s6
s_and_b32 s5, s5, 1
s_mul_i32 s8, s4, 14336
s_lshl_b32 s4, s4, 4
s_mul_i32 s9, s5, 448
s_mul_i32 s13, s5, {2*14*7168}
v_lshlrev_b32 v6, 4, v0
v_lshrrev_b32 v5, 5, v0
v_and_b32 v9, 31, v0
v_mul_u32_u24 v8, 896, v5
v_lshl_add_u32 v8, v9, 2, v8
v_lshlrev_b32 v7, 3, v9
s_lshl_b32 s11, s7, 10
v_mov_b32 v10, {OOB}
v_add_u32 v11, 8192, v6
v_cmp_lt_u32 vcc, 5, v2
v_cndmask_b32 v11, v11, v10, vcc
s_waitcnt lgkmcnt(0)""")
    stamp(k, 1)
    srd(k, 56, S_WS, WS_ZT, ACT_BYTES)
    srd(k, 60, P(0), 0, ACT_BYTES)
    srd(k, 64, S_WS, WS_PW1, 4*14*7168)
    srd(k, 68, S_WS, 0, WS_MOD1 + 2688*4)
    srd(k, 76, S_WS, WS_PW3, 16*14*7168)
    k(f"s_add_u32 m0, s11, {K3_AZ}\ns_nop 0")
    vm.op("Z", "buffer_load_dwordx4 v6, s[56:59], s8 offen lds")
    k(f"s_add_u32 m0, s11, {K3_AZ + 8192}\ns_nop 0")
    vm.op("Z", "buffer_load_dwordx4 v11, s[56:59], s8 offen lds")
    RX = 12; C1 = 20; SB = 34; WR = 100
    for i in range(7):
        vm.op("X", f"buffer_load_dword v{RX+i}, v8, s[60:63], s8 offen offset:{128*i}")
    k(f"s_mov_b32 s11, {WS_MOD1 + 4*448*4}\ns_mov_b32 s12, {WS_MOD + 3*448*4}")
    for i in range(7):
        vm.op("P", f"buffer_load_dwordx2 v[{C1+2*i}:{C1+2*i+1}], v7, s[68:71], s11 offen offset:{256*i}")
        vm.op("P", f"buffer_load_dwordx2 v[{SB+2*i}:{SB+2*i+1}], v7, s[68:71], s12 offen offset:{256*i}")
    k(f"""v_lshl_add_u32 v48, v2, 2, v4
v_lshrrev_b32 v49, 2, v3
v_lshl_add_u32 v49, v48, 2, v49
v_lshlrev_b32 v49, 5, v49
v_and_b32 v50, 3, v3
v_lshl_add_u32 v49, v50, 3, v49
v_mul_u32_u24 v50, 904, v3
v_lshl_add_u32 v50, v48, 3, v50
v_add_u32 v50, {K3_Z2}, v50
v_mul_u32_u24 v51, 904, v5
v_lshl_add_u32 v51, v9, 2, v51
v_add_u32 v51, {K3_Z2}, v51
v_lshrrev_b32 v52, 1, v5
v_lshrrev_b32 v53, 2, v9
v_xor_b32 v52, v52, v53
v_lshlrev_b32 v52, 4, v52
v_lshl_add_u32 v52, v5, 7, v52
v_and_b32 v53, 3, v9
v_lshl_add_u32 v52, v53, 2, v52""")
    vm.wait("Z"); k("s_barrier")
    stamp(k, 2)
    RZ = 54
    L3 = k.label("r3"); L3b = k.label("r3")
    for i in range(3):
        k(f"ds_read_b64_tr_b16 v[{RZ+2*i}:{RZ+2*i+1}], v49 offset:{K3_AZ + 4096*i}")
    k(f"s_cmp_gt_u32 s7, 3\ns_cbranch_scc1 {L3}")
    k(f"ds_read_b64_tr_b16 v[{RZ+6}:{RZ+7}], v49 offset:{K3_AZ + 4096*3}\ns_waitcnt lgkmcnt(0)\nds_write_b64 v50, v[{RZ+6}:{RZ+7}] offset:768")
    k(f"{L3}:\ns_waitcnt lgkmcnt(0)")
    for i in range(3):
        k(f"ds_write_b64 v50, v[{RZ+2*i}:{RZ+2*i+1}] offset:{256*i}")
    k("s_waitcnt lgkmcnt(0)\ns_barrier")
    for i in range(7):
        k(f"ds_read_b32 v{RZ+i}, v51 offset:{128*i}")
    X = list(range(62, 76)); T = list(range(76, 84)); PX1 = list(range(84, 91)); PH2 = list(range(91, 98))
    PA = list(range(RX, RX+7))
    k(f"s_add_u32 s14, s13, {14*7168}\ns_lshr_b32 s15, s2, 3\ns_mul_i32 s15, s15, 50176")
    vm.wait("P"); k("s_waitcnt lgkmcnt(0)")
    def chain():
        for i in range(7):
            a, b = X[2*i], X[2*i+1]
            unpack(k, RX+i, a, b); unpack(k, RZ+i, T[0], T[1])
            k(f"v_add_f32 v{a}, v{a}, v{T[0]}\nv_add_f32 v{b}, v{b}, v{T[1]}")
            pack(k, PX1[i], a, b)
        for x in X: rnd(k, x)
        mb, rinv = ln_stats(k, X, T, sum32)
        ln_apply(k, X, mb, rinv)
        for i, x in enumerate(X): k(f"v_mul_f32 v{x}, v{x}, v{C1+i}")
        for x in X: rnd(k, x)
        for i, x in enumerate(X): k(f"v_add_f32 v{x}, v{x}, v{SB+i}")
        for i in range(7): pack(k, PH2[i], X[2*i], X[2*i+1])
        for x in X: rnd(k, x)
        mb, rinv = ln_stats(k, X, T, sum32)
        ln_apply(k, X, mb, rinv, PA)
        for i in range(7): k(f"ds_write_b32 v52, v{PA[i]} offset:{K3_AZ + 2048*i}")
    lines = capture(k, chain)
    bg = []
    for s in range(14):
        def f(s=s):
            vm.op(f"W{s}", f"buffer_load_dwordx4 v[{WR+8*s}:{WR+8*s+3}], v6, s[64:67], s13 offen")
            vm.op(f"W{s}", f"buffer_load_dwordx4 v[{WR+8*s+4}:{WR+8*s+7}], v6, s[64:67], s14 offen")
            k("s_add_u32 s13, s13, 7168\ns_add_u32 s14, s14, 7168")
        bg.append(f)
    for j in range(7 if PF3 == "k3" else 0):
        def f():
            vm.op("PF", f"buffer_load_dwordx4 v[212:215], v6, s[76:79], s15 offen")
            k("s_add_u32 s15, s15, 8192")
        bg.append(f)
    interleave(k, lines, bg)
    afrag_base64(k, 48, 49, 50)
    ACC = 20; BUF = 28
    for i in range(8): k(f"v_mov_b32 v{ACC+i}, 0")
    srd(k, 72, S_WS, WS_G, ACT_BYTES)
    stamp(k, 3)
    k("s_waitcnt lgkmcnt(0)\ns_barrier")
    stamp(k, 4)
    Lst = k.label("st")
    k(f"s_cmp_eq_u32 s7, 7\ns_cbranch_scc1 {Lst}")
    D = 5
    def rd(s):
        b = BUF + 4 * (s % D)
        k(f"ds_read_b128 v[{b}:{b+3}], v{49 if s & 1 else 48} offset:{K3_AZ + 2048*(s>>1)}")
    for s in range(D): rd(s)
    for s in range(14):
        b = BUF + 4 * (s % D)
        k(f"s_waitcnt vmcnt({vm.cnt(f'W{s}')}) lgkmcnt({min(D, 14 - s) - 1})")
        mf(k, ACC, WR+8*s, b); mf(k, ACC+4, WR+8*s+4, b)
        if s + D < 14: rd(s + D)
    stamp(k, 5)
    k(f"""v_mov_b32 v48, {f2u(GC0)}
v_mov_b32 v49, {f2u(GC1)}
v_add_u32 v50, s4, v3
v_mul_u32_u24 v50, 896, v50
v_lshl_add_u32 v50, v4, 3, v50
v_lshl_add_u32 v50, v2, 5, v50""")
    xs = list(range(ACC, ACC+8))
    for x in xs: rnd(k, x)
    gelu(k, xs, list(range(28, 36)), 48, 49)
    for c in range(2):
        a = ACC + 4*c
        pack(k, 36+2*c, a, a+1); pack(k, 37+2*c, a+2, a+3)
        k(f"buffer_store_dwordx2 v[{36+2*c}:{37+2*c}], v50, s[72:75], s9 offen offset:{224*c}")
    stamp_flush(k, 1, 6)
    k(f"{Lst}:")
    L1 = k.label("c1"); L2 = k.label("c2")
    k(f"s_cmp_eq_u32 s5, 1\ns_cbranch_scc1 {L1}")
    srd(k, 72, S_WS, WS_X1, ACT_BYTES)
    for i in range(7): k(f"buffer_store_dword v{PX1[i]}, v8, s[72:75], s8 offen offset:{128*i}")
    k(f"s_branch {L2}\n{L1}:")
    srd(k, 72, S_WS, WS_H2, ACT_BYTES)
    for i in range(7): k(f"buffer_store_dword v{PH2[i]}, v8, s[72:75], s8 offen offset:{128*i}")
    k(f"{L2}:")
    k(f"{Lend}:\ns_endpgm")
    return k, (256, 512, K3_LDS)

K4_A = 0; K4_ST = 32768; K4_LDS = 34816
def gen_k4():
    k = Kern("k4_kernel"); vm = VM(k)
    Lend = "k4_end"
    k(f"s_cmp_ge_u32 s2, 256\ns_cbranch_scc1 {Lend}")
    stamp(k, 0)
    k("s_load_dwordx2 s[52:53], s[0:1], 144")
    lane_ids(k); tile_ids32(k)
    k(f"""s_lshl_b32 s9, s6, 1
v_lshlrev_b32 v7, 4, v0
s_mul_i32 s13, s5, {14*7168}
v_and_b32 v5, 3, v2
v_lshrrev_b32 v6, 3, v1
v_lshl_add_u32 v5, v5, 3, v6
v_lshrrev_b32 v6, 1, v5
v_and_b32 v6, 7, v6
v_and_b32 v8, 7, v1
v_xor_b32 v6, v6, v8
v_lshrrev_b32 v8, 2, v2
v_lshl_add_u32 v6, v8, 3, v6
v_add_u32 v5, s4, v5""")
    for j in range(4):
        d = 10 + j
        k(f"""v_add_u32 v8, {16*j}, v6
v_mul_u32_u24 v9, 0x12493, v8
v_lshrrev_b32 v9, 20, v9
v_lshrrev_b32 v14, 1, v9
v_add_u32 v14, 1, v14
v_and_b32 v9, 1, v9
v_lshlrev_b32 v9, 1, v9
v_subrev_u32 v9, 1, v9
v_mul_i32_i24 v9, v9, v14
v_add_u32 v9, v5, v9
v_mul_i32_i24 v{d}, 896, v9
v_lshl_add_u32 v{d}, v8, 4, v{d}""")
    k(f"""v_mov_b32 v8, {OOB}
v_cmp_lt_u32 vcc, 3, v2
v_cndmask_b32 v13, v13, v8, vcc
v_add_u32 v15, s4, v3
v_mul_u32_u24 v15, 896, v15
v_lshl_add_u32 v15, v4, 3, v15
v_lshl_add_u32 v15, v2, 5, v15
s_waitcnt lgkmcnt(0)""")
    stamp(k, 1)
    srd(k, 56, S_WS, WS_G, ACT_BYTES)
    srd(k, 60, S_WS, WS_H2, ACT_BYTES)
    srd(k, 64, S_WS, WS_PW2, 4*14*7168)
    srd(k, 68, S_WS, WS_XP, ACT_BYTES)
    srd(k, 72, S_WS, WS_ST, 65536)
    k(f"s_lshl_b32 s11, s7, 10")
    for j in range(4):
        k(f"s_add_u32 m0, s11, {K4_A + 8192*j}\ns_nop 0")
        vm.op("A", f"buffer_load_dwordx4 v{10+j}, s[56:59], 0 offen lds")
    L7 = k.label("w7")
    k(f"s_cmp_eq_u32 s7, 7\ns_cbranch_scc1 {L7}")
    WR = 88
    for s in range(14):
        vm.op(f"W{s}", f"buffer_load_dwordx4 v[{WR+4*s}:{WR+4*s+3}], v7, s[64:67], s13 offen")
        if s < 13: k("s_add_u32 s13, s13, 7168")
    k(f"s_add_u32 s10, s9, {16*896}")
    vm.op("H", f"buffer_load_dwordx2 v[16:17], v15, s[60:63], s9 offen")
    vm.op("H", f"buffer_load_dwordx2 v[18:19], v15, s[60:63], s10 offen")
    afrag_base64(k, 81, 82, 83)
    ACC = 24; BUF = 32
    for i in range(8): k(f"v_mov_b32 v{ACC+i}, 0")
    vm.wait("A"); k("s_barrier")
    stamp(k, 2)
    D = 6
    def rd(s):
        b = BUF + 8 * (s % D); va = 82 if s & 1 else 81
        k(f"ds_read_b128 v[{b}:{b+3}], v{va} offset:{4096*(s>>1)}\nds_read_b128 v[{b+4}:{b+7}], v{va} offset:{4096*(s>>1) + 2048}")
    for s in range(D): rd(s)
    for s in range(14):
        b = BUF + 8 * (s % D)
        k(f"s_waitcnt vmcnt({vm.cnt(f'W{s}')}) lgkmcnt({2 * (min(D, 14 - s) - 1)})")
        mf(k, ACC, WR+4*s, b); mf(k, ACC+4, WR+4*s, b+4)
        if s + D < 14: rd(s + D)
    stamp(k, 3)
    k(f"""v_mul_u32_u24 v84, 56, v3
v_lshl_add_u32 v84, v2, 3, v84
v_add_u32 v84, {K4_ST}, v84
s_waitcnt vmcnt(0)""")
    for mt in range(2):
        a = ACC + 4*mt
        for r in range(4): rnd(k, a+r)
        unpack(k, 16+2*mt, 42, 43); unpack(k, 17+2*mt, 44, 45)
        for r in range(4): k(f"v_add_f32 v{a+r}, v{a+r}, v{42+r}")
        pack(k, 46+2*mt, a, a+1); pack(k, 47+2*mt, a+2, a+3)
        k(f"buffer_store_dwordx2 v[{46+2*mt}:{47+2*mt}], v15, s[68:71], s{9+mt} offen")
        for r in range(4): rnd(k, a+r)
        k(f"v_add_f32 v50, v{a}, v{a+1}\nv_add_f32 v51, v{a+2}, v{a+3}\nv_add_f32 v50, v50, v51")
        allred4(k, 50, 52)
        k(f"v_mul_f32 v50, {f2u(1.0/16)}, v50")
        for r in range(4): k(f"v_sub_f32 v{42+r}, v{a+r}, v50")
        k("v_mul_f32 v51, v42, v42\nv_fmac_f32 v51, v43, v43\nv_fmac_f32 v51, v44, v44\nv_fmac_f32 v51, v45, v45")
        allred4(k, 51, 52)
        k(f"ds_write_b64 v84, v[50:51] offset:{16*56*mt}")
    k(f"s_waitcnt lgkmcnt(0)\ns_barrier")
    stamp_flush(k, 2, 4)
    k("s_endpgm")
    k(f"{L7}:")
    k(f"""s_waitcnt vmcnt(0)
s_barrier""")
    if PF3 == "k4":
        srd(k, 76, S_WS, WS_PW3, 16*14*7168)
        k(f"s_lshr_b32 s14, s2, 3\ns_mul_i32 s14, s14, 50176\nv_lshlrev_b32 v12, 4, v1")
        for j in range(49):
            k(f"buffer_load_dwordx4 v[28:31], v12, s[76:79], s14 offen offset:{1024*(j%4)}")
            if j % 4 == 3: k("s_add_u32 s14, s14, 4096")
    k(f"""v_and_b32 v5, 31, v1
v_mul_u32_u24 v6, 56, v5
v_add_u32 v6, {K4_ST}, v6
v_add_u32 v7, s4, v5
v_lshlrev_b32 v7, 5, v7
s_lshl_b32 s10, s5, 3
s_barrier""")
    for w in range(7): k(f"ds_read_b64 v[{10+2*w}:{11+2*w}], v6 offset:{8*w}")
    k("s_waitcnt lgkmcnt(0)")
    k("v_add_f32 v24, v10, v12\nv_add_f32 v25, v14, v16\nv_add_f32 v26, v18, v20\nv_add_f32 v24, v24, v22\nv_add_f32 v25, v25, v26\nv_add_f32 v24, v24, v25")
    k(f"v_mul_f32 v24, {f2u(1.0/7)}, v24")
    k("v_add_f32 v25, v11, v13\nv_add_f32 v26, v15, v17\nv_add_f32 v27, v19, v21\nv_add_f32 v25, v25, v23\nv_add_f32 v26, v26, v27\nv_add_f32 v25, v25, v26\nv_mov_b32 v26, 0")
    for w in range(7): k(f"v_sub_f32 v27, v{10+2*w}, v24\nv_fmac_f32 v26, v27, v27")
    k(f"v_fmac_f32 v25, {f2u(16.0)}, v26")
    k("buffer_store_dwordx2 v[24:25], v7, s[72:75], s10 offen")
    k(f"{Lend}:\ns_endpgm")
    return k, (256, 512, K4_LDS)

K5_STAT = 114688; K5_LDS = K5_STAT + 1024
def gen_k5():
    k = Kern("k5_kernel"); vm = VM(k)
    Lend = "k5_end"
    k(f"s_cmp_ge_u32 s2, 256\ns_cbranch_scc1 {Lend}")
    stamp(k, 0)
    k("s_load_dwordx2 s[52:53], s[0:1], 144")
    lane_ids(k)
    k(f"""s_and_b32 s4, s2, 7
s_lshr_b32 s5, s2, 3
s_lshl_b32 s4, s4, 1
s_lshr_b32 s6, s5, 4
s_add_u32 s4, s4, s6
s_lshl_b32 s4, s4, 7
s_and_b32 s5, s5, 15
s_mul_i32 s6, s5, 112
s_lshl_b32 s9, s6, 1
s_mul_i32 s13, s5, {14*7168}
v_lshrrev_b32 v5, 3, v1
v_lshl_add_u32 v5, v2, 3, v5
v_lshrrev_b32 v6, 1, v5
v_and_b32 v6, 7, v6
v_and_b32 v7, 7, v1
v_xor_b32 v6, v6, v7
v_add_u32 v5, s4, v5
v_mul_u32_u24 v10, 896, v5
v_lshl_add_u32 v10, v6, 4, v10
v_add_u32 v11, {64*896}, v10
v_lshlrev_b32 v12, 4, v0
v_lshlrev_b32 v7, 4, v4
v_lshl_add_u32 v7, v2, 6, v7
s_lshl_b32 s10, s6, 2
s_lshl_b32 s76, s7, 10
s_waitcnt lgkmcnt(0)""")
    stamp(k, 1)
    srd(k, 56, S_WS, WS_XP, ACT_BYTES)
    srd(k, 60, S_WS, WS_PW3, 16*14*7168)
    srd(k, 64, S_WS, WS_ST, 65536)
    srd(k, 68, S_WS, WS_CS3, 1792*4)
    srd(k, 72, S_WS, WS_H3, 2048*3584)
    srd(k, 84, S_WS, WS_PW4, 4*56*7168)
    def issueA(vmx, c):
        k(f"s_add_u32 m0, s76, {16384*c}\ns_mov_b32 s79, {128*c}")
        vmx.op(f"A{c}", "buffer_load_dwordx4 v10, s[56:59], s79 offen lds")
        k(f"s_add_u32 m0, s76, {16384*c + 8192}\ns_nop 0")
        vmx.op(f"A{c}", "buffer_load_dwordx4 v11, s[56:59], s79 offen lds")
    L7 = k.label("w7"); Lpf = k.label("pf")
    k(f"s_cmp_eq_u32 s7, 7\ns_cbranch_scc1 {L7}")
    WR = 16; ACC = 72; BUF = 104; CSR = 152
    def issueW(s):
        vm.op(f"W{s}", f"buffer_load_dwordx4 v[{WR+4*s}:{WR+4*s+3}], v12, s[60:63], s13 offen")
        k("s_add_u32 s13, s13, 7168")
    issueA(vm, 0); issueW(0); issueW(1); issueA(vm, 1); issueW(2); issueW(3); issueA(vm, 2)
    afrag_base64(k, 13, 14, 15)
    k(f"v_add_u32 v8, 65536, v13\nv_add_u32 v9, 65536, v14")
    for i in range(32): k(f"v_mov_b32 v{ACC+i}, 0")
    D = 12; N = 112
    stages = {0: 0, 16: 1, 32: 2, 48: 3, 64: 4, 80: 5, 96: 6}
    sched = {}
    for c in range(3, 7): sched.setdefault(16*(c-3) + 2, []).append(lambda c=c: issueA(vm, c))
    for s_ in range(4, 14): sched.setdefault(8*(s_-4) + 5, []).append(lambda s_=s_: issueW(s_))
    sched.setdefault(90, []).append(lambda: vm.op("CS", f"buffer_load_dwordx4 v[{CSR}:{CSR+3}], v7, s[68:71], s10 offen"))
    def rd(i):
        s, mt = divmod(i, 8)
        if i in stages:
            vm.wait(f"A{stages[i]}"); k("s_barrier")
            if i == 0: stamp(k, 2)
        c = s >> 1
        off = 16384 * c + 2048 * mt
        va = (14 if s & 1 else 13) if c < 4 else (9 if s & 1 else 8)
        if c >= 4: off -= 65536
        b = BUF + 4 * (i % D)
        k(f"ds_read_b128 v[{b}:{b+3}], v{va} offset:{off}")
    for i in range(D): rd(i)
    for i in range(N):
        s, mt = divmod(i, 8)
        b = BUF + 4 * (i % D)
        w = f"vmcnt({vm.cnt(f'W{s}')}) " if mt == 0 else ""
        k(f"s_waitcnt {w}lgkmcnt({min(D, N - i) - 1})")
        mf(k, ACC + 4*mt, WR + 4*s, b)
        for f in sched.get(i, []): f()
        if i + D < N: rd(i + D)
    stamp(k, 3)
    k(f"""v_mov_b32 v13, {f2u(GC0)}
v_mov_b32 v14, {f2u(GC1)}
v_add_u32 v15, s4, v3
v_mul_u32_u24 v15, 3584, v15
v_lshl_add_u32 v15, v2, 5, v15
v_lshl_add_u32 v15, v4, 3, v15
v_lshlrev_b32 v8, 3, v3
v_add_u32 v8, {K5_STAT}, v8
s_barrier""")
    for mt in range(8): k(f"ds_read_b64 v[{16+2*mt}:{17+2*mt}], v8 offset:{128*mt}")
    k("s_waitcnt vmcnt(0) lgkmcnt(0)")
    for h in range(4):
        xs = list(range(ACC + 8*h, ACC + 8*h + 8))
        for j, x in enumerate(xs):
            mt = 2*h + j // 4
            k(f"v_fma_f32 v{x}, -v{16+2*mt}, v{CSR + j % 4}, v{x}")
        for j, x in enumerate(xs):
            mt = 2*h + j // 4
            k(f"v_mul_f32 v{x}, v{x}, v{17+2*mt}")
        for x in xs: rnd(k, x)
        gelu(k, xs, list(range(32, 40)), 13, 14)
        for q in range(2):
            a = ACC + 8*h + 4*q; p = 40 + 4*(h % 2) + 2*q
            pack(k, p, a, a+1); pack(k, p+1, a+2, a+3)
            k(f"buffer_store_dwordx2 v[{p}:{p+1}], v15, s[72:75], s9 offen {H3MOD}")
            k(f"s_add_u32 s9, s9, {16*3584}")
    stamp_flush(k, 3, 4)
    k("s_endpgm")
    k(f"{L7}:")
    v7m = VM(k)
    k(f"v_add_u32 v5, s4, v1\nv_lshlrev_b32 v5, 5, v5")
    for t in range(2):
        v7m.op("S", f"buffer_load_dwordx4 v[{16+8*t}:{19+8*t}], v5, s[64:67], 0 offen offset:{2048*t}")
        v7m.op("S", f"buffer_load_dwordx4 v[{20+8*t}:{23+8*t}], v5, s[64:67], 0 offen offset:{2048*t+16}")
    for c in range(7): issueA(v7m, c)
    v7m.wait("S")
    for t in range(2):
        b = 16 + 8*t
        k(f"""v_add_f32 v50, v{b}, v{b+2}
v_add_f32 v51, v{b+4}, v{b+6}
v_add_f32 v50, v50, v51
v_mul_f32 v50, 0.25, v50
v_add_f32 v51, v{b+1}, v{b+3}
v_add_f32 v52, v{b+5}, v{b+7}
v_add_f32 v51, v51, v52
v_sub_f32 v52, v{b}, v50
v_mul_f32 v53, v52, v52
v_sub_f32 v52, v{b+2}, v50
v_fmac_f32 v53, v52, v52
v_sub_f32 v52, v{b+4}, v50
v_fmac_f32 v53, v52, v52
v_sub_f32 v52, v{b+6}, v50
v_fmac_f32 v53, v52, v52
v_fmac_f32 v51, {f2u(112.0)}, v53
v_mul_f32 v51, {f2u(1.0/448)}, v51""")
        den_from_var(k, 51); rnd(k, 50)
        k(f"v_lshlrev_b32 v6, 3, v1\nv_add_u32 v6, {K5_STAT}, v6\nds_write_b64 v6, v[50:51] offset:{512*t}")
    k(f"s_lshr_b32 s14, s2, 3\ns_mul_i32 s14, s14, 50176\nv_lshlrev_b32 v12, 4, v1")
    for c in range(7):
        v7m.wait(f"A{c}"); k("s_waitcnt lgkmcnt(0)\ns_barrier")
        for j in range(7 if PF4 == "k5" else 0):
            v7m.op("PF", f"buffer_load_dwordx4 v[28:31], v12, s[84:87], s14 offen")
            k("s_add_u32 s14, s14, 1024")
    k("s_barrier")
    k(f"{Lend}:\ns_endpgm")
    return k, (256, 512, K5_LDS)

K6_LDS = 114688
def gen_k6():
    k = Kern("k6_kernel"); vm = VM(k)
    Lend = "k6_end"
    k(f"s_cmp_ge_u32 s2, 256\ns_cbranch_scc1 {Lend}")
    stamp(k, 0)
    k("s_load_dwordx2 s[52:53], s[0:1], 144\ns_load_dwordx2 s[48:49], s[0:1], 128")
    lane_ids(k); tile_ids32(k)
    k(f"""s_lshl_b32 s9, s6, 1
v_lshl_add_u32 v5, v2, 2, v4
v_and_b32 v6, 15, v5
v_xor_b32 v6, v6, v3
v_add_u32 v5, s4, v5
v_mul_u32_u24 v10, 3584, v5
v_lshl_add_u32 v10, v6, 4, v10
v_lshlrev_b32 v11, 4, v0
v_add_u32 v15, s4, v3
v_mul_u32_u24 v15, 896, v15
v_lshl_add_u32 v15, v4, 3, v15
v_lshl_add_u32 v15, v2, 5, v15
v_lshlrev_b32 v7, 4, v4
v_lshl_add_u32 v7, v2, 6, v7
s_lshl_b32 s12, s6, 2
s_add_u32 s12, s12, {WS_MOD + 5*448*4}
s_add_u32 s10, s9, {16*896}
s_mul_i32 s13, s5, {56*7168}
s_lshl_b32 s76, s7, 10
s_waitcnt lgkmcnt(0)""")
    stamp(k, 1)
    srd(k, 56, S_WS, WS_H3, 2048*3584)
    srd(k, 60, S_WS, WS_PW4, 4*56*7168)
    srd(k, 64, S_WS, WS_XP, ACT_BYTES)
    srd(k, 68, S_WS, WS_X1, ACT_BYTES)
    srd(k, 72, S_WS, 0, WS_MOD + 2688*4)
    srd(k, 84, S_OUT, 0, ACT_BYTES)
    def issueA(vmx, c):
        k(f"s_add_u32 m0, s76, {8192*c}\ns_mov_b32 s15, {256*c}")
        vmx.op(f"A{c}", "buffer_load_dwordx4 v10, s[56:59], s15 offen lds")
    L7 = k.label("w7")
    k(f"s_cmp_eq_u32 s7, 7\ns_cbranch_scc1 {L7}")
    ACC = 32; BUF = 40; WR = 88; AH = K6DW; DW = AH + 4; D = 12
    def issueW(s):
        b = WR + 4*(s % DW)
        vm.op(f"W{s}", f"buffer_load_dwordx4 v[{b}:{b+3}], v11, s[60:63], s13 offen")
        k("s_add_u32 s13, s13, 7168")
    issueA(vm, 0); issueW(0); issueW(1); issueA(vm, 1); issueW(2); issueW(3); issueA(vm, 2)
    for s in range(4, 8): issueW(s)
    issueA(vm, 3)
    for s in range(8, AH): issueW(s)
    for ks in range(4):
        k(f"v_add_u32 v5, {4*ks}, v4\nv_xor_b32 v5, v5, v3\nv_lshlrev_b32 v5, 4, v5\nv_lshl_add_u32 v{24+ks}, v3, 8, v5\nv_add_u32 v{28+ks}, 65536, v{24+ks}")
    for i in range(8): k(f"v_mov_b32 v{ACC+i}, 0")
    stamp(k, 2)
    N = 112
    stages = {0: 0, 8: 1, 16: 3, 32: 5, 48: 7, 64: 9, 80: 11, 96: 13}
    sched = {}
    for c in range(4, 14): sched.setdefault(6*(c-4) + 1, []).append(lambda c=c: issueA(vm, c))
    def rd(i):
        s, mt = divmod(i, 2)
        if i in stages:
            vm.wait(f"A{stages[i]}"); k("s_barrier")
        c, ks = divmod(s, 4)
        off = 8192*c + 4096*mt
        va = 24 + ks
        if c >= 8: off -= 65536; va = 28 + ks
        b = BUF + 4 * (i % D)
        k(f"ds_read_b128 v[{b}:{b+3}], v{va} offset:{off}")
    for i in range(D): rd(i)
    for i in range(N):
        s, mt = divmod(i, 2)
        b = BUF + 4 * (i % D)
        w = f"vmcnt({vm.cnt(f'W{s}')}) " if mt == 0 else ""
        k(f"s_waitcnt {w}lgkmcnt({min(D, N - i) - 1})")
        mf(k, ACC + 4*mt, WR + 4*(s % DW), b)
        for f in sched.get(i, []): f()
        if i + D < N: rd(i + D)
        if mt == 1 and s + AH < 56: issueW(s + AH)
        if mt == 1 and s == 40:
            for m2 in range(2):
                vm.op("E", f"buffer_load_dwordx2 v[{16+2*m2}:{17+2*m2}], v15, s[64:67], s{9+m2} offen")
                vm.op("E", f"buffer_load_dwordx2 v[{20+2*m2}:{21+2*m2}], v15, s[68:71], s{9+m2} offen")
            vm.op("E", f"buffer_load_dwordx4 v[4:7], v7, s[72:75], s12 offen")
    stamp(k, 3)
    k("s_waitcnt vmcnt(0)")
    for mt in range(2):
        b = ACC + 4*mt
        for r in range(4): rnd(k, b+r)
        unpack(k, 16+2*mt, 66, 67); unpack(k, 17+2*mt, 68, 69)
        for r in range(4): k(f"v_add_f32 v{b+r}, v{b+r}, v{66+r}")
        for r in range(4): rnd(k, b+r)
        for r in range(4): k(f"v_mul_f32 v{b+r}, v{b+r}, v{4+r}")
        for r in range(4): rnd(k, b+r)
        unpack(k, 20+2*mt, 66, 67); unpack(k, 21+2*mt, 68, 69)
        for r in range(4): k(f"v_add_f32 v{b+r}, v{b+r}, v{66+r}")
        pack(k, 70+2*mt, b, b+1); pack(k, 71+2*mt, b+2, b+3)
        k(f"buffer_store_dwordx2 v[{70+2*mt}:{71+2*mt}], v15, s[84:87], s{9+mt} offen")
    stamp_flush(k, 4, 4)
    k("s_endpgm")
    k(f"{L7}:")
    v7m = VM(k)
    for c in range(14): issueA(v7m, c)
    for c in (0, 1, 3, 5, 7, 9, 11, 13):
        v7m.wait(f"A{c}"); k("s_barrier")
    k(f"{Lend}:\ns_endpgm")
    return k, (256, 512, K6_LDS)
```
